```python
import torch

def _softmax(x, axis=-1):
    return torch.softmax(x, dim=axis)
def _gelu(x):
    return torch.nn.functional.gelu(x, approximate="tanh")
def _silu(x):
    return torch.nn.functional.silu(x)
def _sigmoid(x):
    return torch.sigmoid(x)
def _layernorm(x, axis=-1, eps=1e-5):
    m = x.mean(dim=axis, keepdim=True)
    v = x.var(dim=axis, keepdim=True, unbiased=False)
    return (x - m) / torch.sqrt(v + eps)
def _scatter_add(tgt, idx, src, axis=0):
    return tgt.clone().index_add_(axis, idx, src)
def _segment_sum(src, seg, n):
    out = torch.zeros((n,) + src.shape[1:], dtype=src.dtype)
    return out.index_add_(0, seg, src)
def _pad(x, pw):
    flat = tuple(v for pair in reversed(pw) for v in pair)
    return torch.nn.functional.pad(x, flat)

kernel_name = 'concat_heads__linear_kernel_hedgehog__spectral_fnet__prompt'

def setup_inputs():

    _w = (lambda a: (lambda t: t.to(torch.bfloat16) if t.is_floating_point() else t)(torch.as_tensor(a)))
    def _A_setup():
        B, S, D, H = 1, 2048, 512, 32
        Dh = D // H
        return {
            "x": _w((lambda *s: torch.randn(*s, dtype=torch.bfloat16) * 0.2)(B, S, D)),
            "wqkv": _w((lambda *s: torch.randn(*s, dtype=torch.bfloat16) * 1.6)(D, 3 * D)),
            "w_phi": _w((lambda *s: torch.randn(*s, dtype=torch.bfloat16) * 1.6)(H, Dh, Dh) * (Dh ** -0.5)),
            "wo": _w((lambda *s: torch.randn(*s, dtype=torch.bfloat16) * 0.8)(D, D)),
        }
    _A_in = _A_setup()

    def _B_setup():
        B, S, D = 1, 2048, 512
        ns = torch.arange(S)[:, None] * torch.arange(S)[None, :]
        nd = torch.arange(D)[:, None] * torch.arange(D)[None, :]
        Ws_re = torch.cos(-2.0 * torch.pi * ns / S).to(float)
        Ws_im = torch.sin(-2.0 * torch.pi * ns / S).to(float)
        Wd_re = torch.cos(-2.0 * torch.pi * nd / D).to(float)
        Wd_im = torch.sin(-2.0 * torch.pi * nd / D).to(float)
        return {
            "x": _w((lambda *s: torch.randn(*s, dtype=torch.bfloat16) * 0.05)(B, S, D)),
            "dft_seq_re": _w(Ws_re),
            "dft_seq_im": _w(Ws_im),
            "dft_hid_re": _w(Wd_re),
            "dft_hid_im": _w(Wd_im),
        }
    _B_in = _B_setup()

    return {
        "A_x": _A_in["x"],
        "A_wqkv": _A_in["wqkv"],
        "A_w_phi": _A_in["w_phi"],
        "A_wo": _A_in["wo"],
        "B_x": _B_in["x"],
        "B_dft_seq_re": _B_in["dft_seq_re"],
        "B_dft_seq_im": _B_in["dft_seq_im"],
        "B_dft_hid_re": _B_in["dft_hid_re"],
        "B_dft_hid_im": _B_in["dft_hid_im"],
    }

def reference(A_x, A_wqkv, A_w_phi, A_wo, B_x, B_dft_seq_re, B_dft_seq_im, B_dft_hid_re, B_dft_hid_im):
    def _A_ref(x, wqkv, w_phi, wo):
        B, S, D = x.shape
        H = 32; Dh = D // H
        qkv = (lambda x, *d: x.permute(*d))((x @ wqkv).reshape(B, S, 3, H, Dh), 2, 0, 3, 1, 4)
        q, k, v = qkv[0], qkv[1], qkv[2]
        pq = torch.einsum("bhsd,hdf->bhsf", q, w_phi)
        pk = torch.einsum("bhsd,hdf->bhsf", k, w_phi)
        phi_q = torch.concatenate([_softmax(pq, axis=-1), _softmax(-pq, axis=-1)], axis=-1)
        phi_k = torch.concatenate([_softmax(pk, axis=-1), _softmax(-pk, axis=-1)], axis=-1)
        kv = torch.einsum("bhsf,bhsd->bhfd", phi_k, v)
        z  = torch.einsum("bhsf->bhf", phi_k)
        num = torch.einsum("bhqf,bhfd->bhqd", phi_q, kv)
        den = torch.einsum("bhqf,bhf->bhq", phi_q, z)[..., None] + 1e-6
        o = num / den
        return (lambda x, *d: x.permute(*d))(o, 0, 2, 1, 3).reshape(B, S, D) @ wo

    def _B_ref(x, dft_seq_re, dft_seq_im, dft_hid_re, dft_hid_im):
        a = torch.einsum("bsd,ed->bse", x, dft_hid_re)
        b = torch.einsum("bsd,ed->bse", x, dft_hid_im)
        y = torch.einsum("ts,bse->bte", dft_seq_re, a) - torch.einsum("ts,bse->bte", dft_seq_im, b)
        return y

    a = _A_ref(A_x, A_wqkv, A_w_phi, A_wo)
    b = _B_ref(B_x, B_dft_seq_re, B_dft_seq_im, B_dft_hid_re, B_dft_hid_im)
    return torch.concatenate([a, b], axis=-1)
```

```python
class Gen:
    def __init__(self):
        self.lines = []
        self.vm = []
        self.uid = 0
    def e(self, s):
        for l in s.split("\n"):
            l = l.strip()
            if l: self.lines.append("    " + l)
    def label(self, name):
        self.lines.append(name + ":")
    def c(self, s):
        self.lines.append("    ; " + s)
    def vmem(self, instr, tag=None):
        self.e(instr)
        self.vm.append(tag)
    def wait_vm(self, tags, extra=""):
        if not isinstance(tags, (set, list)): tags = [tags]
        idx = -1
        for i, t in enumerate(self.vm):
            if t in tags: idx = i
        if idx < 0:
            if extra: self.e("s_waitcnt " + extra)
            return
        n = len(self.vm) - 1 - idx
        n = min(n, 63)
        self.e(f"s_waitcnt vmcnt({n})" + (" " + extra if extra else ""))
        self.vm = self.vm[len(self.vm) - n:] if n > 0 else []
    def wait_vm_all(self):
        self.e("s_waitcnt vmcnt(0)")
        self.vm = []
    def text(self):
        return "\n".join(self.lines) + "\n"

def interleave(main, *others):
    out = []
    n = len(main)
    if n == 0:
        for o in others: out.extend(o)
        return out
    pos = [0] * len(others)
    for i, m in enumerate(main):
        out.append(m)
        for k, o in enumerate(others):
            tgt = (len(o) * (i + 1) + n - 1) // n
            while pos[k] < tgt:
                out.append(o[pos[k]]); pos[k] += 1
    return out
```

```python
import re
TRANS = ('v_exp_f32','v_log_f32','v_rcp_f32','v_rsq_f32','v_sqrt_f32','v_sin_f32','v_cos_f32')
def regs_of(tok):
    tok = tok.strip()
    neg = tok.lstrip('-').strip('|')
    m = re.match(r'^([vas])\[(\d+):(\d+)\]$', neg)
    if m: return [(m.group(1), i) for i in range(int(m.group(2)), int(m.group(3)) + 1)]
    m = re.match(r'^([vas])(\d+)$', neg)
    if m: return [(m.group(1), int(m.group(2)))]
    if neg in ('vcc', 'vcc_lo', 'vcc_hi'): return [('s', 106), ('s', 107)]
    if neg == 'm0': return [('s', 124)]
    if neg == 'exec': return [('s', 126), ('s', 127)]
    return []
def split_ops(rest):
    ops = []; cur = ''; depth = 0
    for ch in rest:
        if ch == '[': depth += 1
        if ch == ']': depth -= 1
        if ch == ',' and depth == 0: ops.append(cur.strip()); cur = ''
        else: cur += ch
    if cur.strip(): ops.append(cur.strip())
    out = []
    for o in ops:
        out.append(o.split()[0] if o.split() else o)
    return out
def classify(line):
    s = line.strip()
    if not s or s.startswith(';') or s.endswith(':') or s.startswith('.'): return None
    parts = s.split(None, 1)
    op = parts[0]; rest = parts[1] if len(parts) > 1 else ''
    rest = rest.split(';')[0]
    ops = split_ops(rest)
    R = [regs_of(o) for o in ops]
    d = dict(op=op, kind='other', dst=[], src=[], line=s)
    if op.startswith('v_mfma'):
        d['kind'] = 'mfma'; d['dst'] = R[0]; d['srcab'] = R[1] + R[2]; d['srcc'] = R[3]; d['src'] = R[1] + R[2] + R[3]
        d['passes'] = 8 if '32x32x16' in op else 4
    elif op.startswith('v_'):
        d['kind'] = 'valu'
        if op.startswith('v_permlane') and 'swap' in op:
            d['dst'] = R[0] + R[1]; d['src'] = R[0] + R[1]; d['perm'] = True
        elif op.startswith('v_cmp'):
            d['dst'] = R[0]; d['src'] = sum(R[1:], [])
        elif op.startswith('v_cndmask'):
            d['dst'] = R[0]; d['src'] = sum(R[1:], [])
            if len(ops) == 3: d['src'] += regs_of('vcc')
        elif op.startswith('v_dot2'):
            d['dst'] = R[0]; d['src'] = sum(R[1:], []) + (R[0] if 'dot2c' in op else []); d['dot'] = True
            d['srcc'] = R[3] if len(R) > 3 else R[0]
        elif op in ('v_fmac_f32', 'v_writelane_b32') or op.endswith('d16_hi'):
            d['dst'] = R[0]; d['src'] = sum(R, [])
        else:
            d['dst'] = R[0]; d['src'] = sum(R[1:], [])
        d['trans'] = op.replace('_e32', '').replace('_e64', '') in TRANS
        d['rfl'] = op.startswith('v_readfirstlane') or op.startswith('v_readlane')
    elif op.startswith('buffer_') or op.startswith('global_'):
        d['kind'] = 'vmem'
        lds = ' lds' in s
        if 'load' in op:
            if lds: d['src'] = sum(R, []) + [('s', 124)]; d['lds'] = True
            else:
                d['dst'] = R[0]; d['src'] = sum(R[1:], [])
        elif 'store' in op:
            d['src'] = sum(R, []); d['stdata'] = R[0] if ('x4' in op or 'x3' in op) else []
        else:
            d['src'] = sum(R, [])
    elif op.startswith('ds_'):
        d['kind'] = 'ds'
        if 'read' in op: d['dst'] = R[0]; d['src'] = sum(R[1:], [])
        else: d['src'] = sum(R, [])
    elif op.startswith('s_'):
        d['kind'] = 'salu'
        if op == 's_nop': d['nop'] = int(ops[0]) + 1
        elif op.startswith('s_cmp') or op.startswith('s_cbranch') or op in ('s_waitcnt', 's_barrier', 's_branch', 's_endpgm', 's_setprio', 's_sleep'):
            d['src'] = sum(R, [])
        else:
            d['dst'] = R[0] if R else []; d['src'] = sum(R[1:], [])
            if 'saveexec' in op: d['dst'] = d['dst'] + regs_of('exec')
    return d

def fix(lines):
    out = []
    t = 0
    last = {}
    lastC = {}
    lastSt = {}
    def need(reg, table):
        if reg not in last: return 0
        tw, kind, info = last[reg][:3]
        req = table(kind, info)
        return max(0, req - (t - tw - 1)) if req else 0
    for line in lines:
        d = classify(line)
        if d is None:
            out.append(line)
            if line.strip().endswith(':') and not line.strip().startswith(';'):
                pass
            continue
        k = d['kind']
        req = 0
        isv = lambda r: r[0] in 'va'
        if k == 'mfma':
            for r in d['srcab']:
                req = max(req, need(r, lambda kind, info: 2 if kind == 'valu' else ({8: 12, 4: 8}[info] if kind == 'mfma' else 0)))
            for r in d['srcc']:
                def tb(kind, info, r=r):
                    if kind == 'valu': return 2
                    if kind == 'mfma':
                        return 0 if last[r][3:] == (tuple(d['srcc']),) else {8: 10, 4: 6}[info]
                    return 0
                if r in last:
                    tw, kind, info = last[r][:3]
                    if kind == 'valu': q = 2
                    elif kind == 'mfma': q = 0 if last[r][3] == tuple(d['srcc']) else {8: 10, 4: 6}[info]
                    else: q = 0
                    req = max(req, max(0, q - (t - tw - 1)))
            for r in d['dst']:
                if r in last and r not in d['srcc']:
                    tw, kind, info = last[r][:3]
                    if kind == 'mfma': req = max(req, max(0, {8: 12, 4: 8}[info] - (t - tw - 1)))
            for r in regs_of('exec'):
                req = max(req, need(r, lambda kind, info: 4 if kind == 'valu' else 0))
        elif k == 'valu':
            for r in d['src']:
                if isv(r):
                    def tb(kind, info):
                        if kind == 'mfma': return {8: 12, 4: 8}[info]
                        if kind == 'valu':
                            q = 0
                            if info.get('trans') and not d['trans']: q = max(q, 1)
                            if d.get('perm'): q = max(q, 2)
                            if d['rfl']: q = max(q, 1)
                            if info.get('dot') and not (d.get('dot') and r in d['srcc'] and info['op'] == d['op']): q = max(q, 3)
                            return q
                        return 0
                    req = max(req, need(r, tb))
                else:
                    req = max(req, need(r, lambda kind, info: 2 if kind == 'valu' else 0))
            for r in d['dst']:
                if isv(r):
                    req = max(req, need(r, lambda kind, info: {8: 12, 4: 8}[info] if kind == 'mfma' else (3 if (kind == 'valu' and info.get('dot') and not d.get('dot')) else 0)))
                    if r in lastC:
                        tw, p = lastC[r]; req = max(req, max(0, {8: 7, 4: 3}[p] - (t - tw - 1)))
                    if r in lastSt: req = max(req, max(0, 2 - (t - lastSt[r] - 1)))
        elif k in ('vmem', 'ds'):
            for r in d['src'] + d['dst']:
                if isv(r):
                    req = max(req, need(r, lambda kind, info: {8: 12, 4: 8}[info] if kind == 'mfma' else (3 if (kind == 'valu' and info.get('dot')) else 0)))
                else:
                    if r == ('s', 124): req = max(req, need(r, lambda kind, info: 1 if kind == 'salu' else 0))
                    else: req = max(req, need(r, lambda kind, info: 5 if kind == 'valu' else 0))
            for r in d['dst']:
                if r in lastSt: req = max(req, max(0, 1 - (t - lastSt[r] - 1)))
        elif k == 'salu':
            pass
        while req > 0:
            n = min(req, 16)
            out.append(f"    s_nop {n-1}")
            t += n; req -= n
        out.append(line)
        if k == 'mfma':
            for r in d['dst']: last[r] = (t, 'mfma', d['passes'], tuple(d['dst']))
            for r in d['srcc']: lastC[r] = (t, d['passes'])
        elif k == 'valu':
            for r in d['dst']: last[r] = (t, 'valu', d, None)
        elif k == 'salu':
            for r in d['dst']: last[r] = (t, 'salu', d, None)
        elif k in ('vmem', 'ds'):
            for r in d['dst']: last[r] = (t, 'mem', d, None)
            for r in d.get('stdata', []): lastSt[r] = t
        t += d.get('nop', 1)
    return out
```

```python
import sys, os
sys.path.insert(0, 'gen')
from core import *
from haz import fix
OPT = set(os.environ.get('KOPT', '').split(','))
def optv(name, default):
    for o in OPT:
        if o.startswith(name + '='): return int(o[len(name)+1:])
    return default

SLOT = 8192
LDS_TOTAL = 81920
KNAME = "concat_heads__linear_kernel_hedgehog__spectral_fnet__prompt_kernel"

S_W = 3
S_T0, S_T1, S_T2, S_T3, S_T4, S_T5 = 4, 5, 6, 7, 8, 9
SRD = dict(xA=12, wqkv=16, wphi=20, wo=24, xB=28, Cr=32, Ci=36, Hr=40, Hi=44, out=48, dbg=52, ws=56)
SIZES = dict(xA=2048*512*2, wqkv=512*1536*2, wphi=32*16*16*2, wo=512*512*2, xB=2048*512*2,
             Cr=2048*2048*2, Ci=2048*2048*2, Hr=512*512*2, Hi=512*512*2, out=2048*1024*2, dbg=256, ws=16<<20)
KARG = ['xA', 'wqkv', 'wphi', 'wo', 'xB', 'Cr', 'Ci', 'Hr', 'Hi', 'out', 'dbg', 'ws']
S_WLDS = 60
S_R = 61
S_KARG = 72
S_SEL0 = 10; S_SEL1 = 11
def srd(n): b = SRD[n]; return f"s[{b}:{b+3}]"

WS_G = 0
WS_O = 4 << 20
WS_KVP = 6 << 20
WS_FKV = 7 << 20
WS_FO = WS_FKV + 4096
WS_FB = WS_FKV + 8192
WS_STAMP = 14 << 20

def A(lo, n=4): return f"a[{lo}:{lo+n-1}]"
def V(lo, n=4): return f"v[{lo}:{lo+n-1}]"
def mfma(d, a, b, first):
    return f"v_mfma_f32_32x32x16_bf16 {V(d,16)}, {a}, {b}, {'0' if first else V(d,16)}"

V_LANE = 1
V_STAMP = 127

class K(Gen):
    def __init__(self):
        super().__init__()
        self.nstamp = 0
    def stamp(self, name=""):
        if 'stamp' not in OPT: return
        i = self.nstamp; self.nstamp += 1
        assert i < 63
        self.e(f"s_memrealtime s[96:97]\ns_waitcnt lgkmcnt(0)\nv_writelane_b32 v{V_STAMP}, s96, {i}")
        self.stampnames.append(name)
    def stamp_flush(self, role):
        if 'stamp' not in OPT: return
        self.e("s_memrealtime s[96:97]\ns_waitcnt lgkmcnt(0)")
        self.e(f"v_writelane_b32 v{V_STAMP}, s96, 63")
        self.e(f"s_lshl_b32 s{S_T0}, s2, 10\ns_lshl_b32 s{S_T1}, s{S_W}, 8\ns_add_u32 s{S_T0}, s{S_T0}, s{S_T1}")
        self.e(f"s_add_u32 s{S_T0}, s{S_T0}, {WS_STAMP}")
        self.e(f"v_lshlrev_b32 v2, 2, v{V_LANE}")
        self.e(f"buffer_store_dword v{V_STAMP}, v2, {srd('ws')}, s{S_T0} offen")

def dma(g, vo, srdname, soff, ldsoff, tag, sc1=False):
    g.e(f"s_add_u32 m0, s{S_WLDS}, {ldsoff}")
    g.vmem(f"buffer_load_dwordx4 v{vo}, {srd(srdname)}, s{soff} offen{' sc1' if sc1 else ''} lds", tag)

def dma_chunk(g, vo, srdname, sbase, imm, slot_off, tag, sc1=False):
    if imm: g.e(f"s_add_u32 s{S_T4}, s{sbase}, {imm}"); so = S_T4
    else: so = sbase
    dma(g, vo, srdname, so, slot_off, tag, sc1)
    dma(g, vo + 1, srdname, so, slot_off + 4096, tag, sc1)

def pack_store_tile(g, acc, T, vst, srdname, soff, imm, neg=False, sc1=False, tag='st'):
    n = "-" if neg else ""
    for qq in range(2):
        r = acc + 8 * qq
        t = T + 4 * qq
        g.e(f"v_cvt_pk_bf16_f32 v{t+0}, {n}v{r+0}, {n}v{r+1}")
        g.e(f"v_cvt_pk_bf16_f32 v{t+1}, {n}v{r+2}, {n}v{r+3}")
        g.e(f"v_cvt_pk_bf16_f32 v{t+2}, {n}v{r+4}, {n}v{r+5}")
        g.e(f"v_cvt_pk_bf16_f32 v{t+3}, {n}v{r+6}, {n}v{r+7}")
    for qq in range(2):
        t = T + 4 * qq
        g.e(f"v_permlane32_swap_b32 v{t+0}, v{t+2}")
        g.e(f"v_permlane32_swap_b32 v{t+1}, v{t+3}")
    for qq in range(2):
        t = T + 4 * qq
        g.vmem(f"buffer_store_dwordx4 {V(t)}, v{vst}, {srd(srdname)}, s{soff} offen offset:{imm + 32*qq}{' sc1' if sc1 else ''}", tag)

def lane_consts_common(g, T):
    g.e(f"v_lshrrev_b32 v{T}, 3, v{V_LANE}")
    g.e(f"s_lshl_b32 s{S_T2}, s{S_W}, 3")
    g.e(f"v_add_u32 v{T}, s{S_T2}, v{T}")
    g.e(f"v_and_b32 v{T+1}, 7, v{V_LANE}")
    g.e(f"v_lshrrev_b32 v{T+2}, 4, v{V_LANE}")
    g.e(f"s_lshl_b32 s{S_T2}, s{S_SEL0}, 2")
    g.e(f"v_add_u32 v{T+3}, s{S_T2}, v{T+2}")
    g.e(f"v_xor_b32 v{T+3}, v{T+3}, v{T+1}")
    g.e(f"v_lshlrev_b32 v{T+3}, 4, v{T+3}")
    g.e(f"v_and_b32 v{T+2}, 1, v{T+2}")
    g.e(f"v_lshlrev_b32 v{T+2}, 2, v{T+2}")
    g.e(f"v_xor_b32 v{T+2}, v{T+2}, v{T+1}")

def rdA_base(g, dst, T):
    g.e(f"v_and_b32 v{dst}, 31, v{V_LANE}")
    g.e(f"v_lshlrev_b32 v{dst}, 7, v{dst}")
    g.e(f"v_lshrrev_b32 v{T}, 5, v{V_LANE}")
    g.e(f"v_bfe_u32 v{T+1}, v{V_LANE}, 1, 3")
    g.e(f"v_xor_b32 v{T}, v{T}, v{T+1}")
    g.e(f"v_lshl_add_u32 v{dst}, v{T}, 4, v{dst}")

def rdB_base(g, dst, T):
    g.e(f"v_lshrrev_b32 v{T}, 5, v{V_LANE}")
    g.e(f"v_lshlrev_b32 v{T}, 3, v{T}")
    g.e(f"v_bfe_u32 v{T+1}, v{V_LANE}, 2, 2")
    g.e(f"v_add_u32 v{T}, v{T}, v{T+1}")
    g.e(f"v_lshlrev_b32 v{T}, 7, v{T}")
    g.e(f"v_bfe_u32 v{T+2}, v{V_LANE}, 4, 1")
    g.e(f"v_lshlrev_b32 v{T+2}, 5, v{T+2}")
    g.e(f"v_and_b32 v{T+3}, 3, v{V_LANE}")
    g.e(f"v_lshl_add_u32 v{T+2}, v{T+3}, 3, v{T+2}")
    g.e(f"v_bfe_u32 v{T+3}, v{V_LANE}, 3, 1")
    g.e(f"v_lshlrev_b32 v{T+3}, 6, v{T+3}")
    g.e(f"v_xor_b32 v{T+2}, v{T+2}, v{T+3}")
    g.e(f"v_add_u32 v{dst}, v{T}, v{T+2}")

def rB(dstkind, dst, vaddr, off):
    return [f"ds_read_b64_tr_b16 {dstkind}[{dst}:{dst+1}], v{vaddr} offset:{off}",
            f"ds_read_b64_tr_b16 {dstkind}[{dst+2}:{dst+3}], v{vaddr} offset:{off+512}"]

def poll(g, vflag, vtmp, vnonce, soff, name):
    g.wait_vm_all() if False else None
    L = f"L_poll_{name}"
    g.e(f"s_mov_b32 s{S_T5}, 0")
    g.label(L)
    g.e(f"buffer_load_dword v{vtmp}, v{vflag}, {srd('ws')}, s{soff} offen sc1")
    g.e(f"s_add_u32 s{S_T5}, s{S_T5}, 1")
    g.e("s_waitcnt vmcnt(0)")
    g.e(f"v_cmp_eq_u32 vcc, v{vtmp}, v{vnonce}")
    g.e(f"s_cmp_gt_u32 s{S_T5}, 200000")
    g.e(f"s_cbranch_scc1 {L}_x")
    g.e("s_cmp_eq_u64 vcc, exec")
    g.e(f"s_cbranch_scc0 {L}")
    g.label(L + "_x")
    g.vm = []

def get_nonce(g, vn, vtmp):
    L = "L_nonce_" + g.role
    g.e(f"v_mov_b32 v{vtmp}, 0")
    g.e(f"s_mov_b32 s{S_T5}, 0")
    g.label(L)
    g.e(f"buffer_load_dword v{vn}, v{vtmp}, {srd('dbg')}, 0 offen sc1")
    g.e(f"s_add_u32 s{S_T5}, s{S_T5}, 1")
    g.e("s_waitcnt vmcnt(0)")
    g.e(f"v_cmp_ne_u32 vcc, 0, v{vn}")
    g.e(f"s_cmp_gt_u32 s{S_T5}, 200000")
    g.e(f"s_cbranch_scc1 {L}_x")
    g.e("s_cmp_eq_u64 vcc, exec")
    g.e(f"s_cbranch_scc0 {L}")
    g.label(L + "_x")
    g.vm = []

def publish(g, vnonce, vtmp, soff):
    g.e(f"v_mov_b32 v{vtmp}, 0")
    g.e("s_mov_b64 exec, 1")
    g.vmem(f"buffer_store_dword v{vnonce}, v{vtmp}, {srd('ws')}, s{soff} offen sc1", 'flag')
    g.e("s_mov_b64 exec, -1")

def role_A(g):
    g.role = "A"; g.stampnames = []
    V_X, V_WKV, V_WQ, V_WO, V_OD, V_B0, V_B1, V_BW = 2, 3, 5, 7, 9, 10, 11, 12
    V_RA = 13
    V_ST, V_NON, V_KS, V_KL, V_FL = 17, 18, 19, 20, 21
    V_WP = 22
    V_SEL = 30
    T = 38
    ACC0 = 48
    ACC1 = 64
    FR = 80
    X = 112
    S_RB, S_G, S_XROW, S_WCOL, S_KVW, S_KVR, S_FKW, S_FKR, S_FOW, S_FOR, S_OW = range(S_R, S_R + 11)
    S_OR, S_WOC, S_OUT = 96, 97, 98
    if 'stamp' in OPT: S_OR, S_WOC, S_OUT = 98, 99, 100
    g.e("s_setprio 2")
    g.e(f"s_and_b32 s{S_T0}, s2, 7")
    g.e(f"s_lshr_b32 s{S_T1}, s2, 3")
    g.e(f"s_lshr_b32 s{S_T2}, s{S_T0}, 1")
    g.e(f"s_lshl_b32 s{S_T2}, s{S_T2}, 2")
    g.e(f"s_lshr_b32 s{S_T3}, s{S_T1}, 3")
    g.e(f"s_add_u32 s{S_RB}, s{S_T2}, s{S_T3}")
    g.e(f"s_and_b32 s{S_T2}, s{S_T0}, 1")
    g.e(f"s_lshl_b32 s{S_T2}, s{S_T2}, 3")
    g.e(f"s_and_b32 s{S_T3}, s{S_T1}, 7")
    g.e(f"s_add_u32 s{S_G}, s{S_T2}, s{S_T3}")
    g.e(f"s_lshl_b32 s{S_T0}, s{S_RB}, 2")
    g.e(f"s_add_u32 s{S_T0}, s{S_T0}, s{S_W}")
    g.e(f"s_lshl_b32 s{S_XROW}, s{S_T0}, 15")
    g.e(f"s_lshl_b32 s{S_WCOL}, s{S_G}, 6")
    g.e(f"v_and_b32 v{V_X}, 31, v{V_LANE}")
    g.e(f"v_lshlrev_b32 v{V_X}, 10, v{V_X}")
    g.e(f"v_lshrrev_b32 v{T}, 5, v{V_LANE}")
    g.e(f"v_lshl_add_u32 v{V_X}, v{T}, 4, v{V_X}")
    lane_consts_common(g, T)
    g.e(f"v_lshrrev_b32 v{T+4}, 2, v{T+2}")
    g.e(f"v_and_b32 v{T+5}, 3, v{T+2}")
    g.e(f"v_lshlrev_b32 v{T+5}, 4, v{T+5}")
    g.e(f"v_mul_u32_u24 v{T+6}, 3072, v{T}")
    g.e(f"v_add_u32 v{T+6}, v{T+6}, v{T+5}")
    g.e(f"v_lshl_add_u32 v{V_WKV}, v{T+4}, 10, v{T+6}")
    g.e(f"v_add_u32 v{V_WKV}, 1024, v{V_WKV}")
    g.e(f"v_add_u32 v{V_WKV+1}, {32*3072}, v{V_WKV}")
    g.e(f"v_mul_u32_u24 v{T+7}, {64*3072}, v{T+4}")
    g.e(f"v_add_u32 v{V_WQ}, v{T+6}, v{T+7}")
    g.e(f"v_add_u32 v{V_WQ+1}, {32*3072}, v{V_WQ}")
    g.e(f"v_lshlrev_b32 v{T+6}, 10, v{T}")
    g.e(f"v_lshl_add_u32 v{V_WO}, v{T+2}, 4, v{T+6}")
    g.e(f"v_add_u32 v{V_WO+1}, {32*1024}, v{V_WO}")
    g.e(f"v_add_u32 v{V_OD}, v{T+6}, v{T+3}")
    srd_setup(g, ['xA', 'wqkv', 'wphi', 'wo', 'out', 'dbg', 'ws'])
    g.e(f"s_or_b32 s{S_T0}, s2, s{S_W}")
    g.e(f"s_cmp_lg_u32 s{S_T0}, 0")
    g.e("s_cbranch_scc1 L_nononce")
    g.e("s_memrealtime s[96:97]\ns_waitcnt lgkmcnt(0)")
    g.e("s_or_b32 s96, s96, 1")
    g.e(f"v_mov_b32 v{T}, s96\nv_mov_b32 v{T+1}, 0")
    g.e("s_mov_b64 exec, 1")
    g.e(f"buffer_store_dword v{T}, v{T+1}, {srd('dbg')}, 0 offen sc1")
    g.e("s_mov_b64 exec, -1")
    g.e("s_nop 1")
    g.label("L_nononce")
    g.vm = ['x'] if False else []
    for t in range(8):
        for kk in range(4):
            i = 4 * t + kk
            g.vmem(f"buffer_load_dwordx4 {A(4*i)}, v{V_X}, {srd('xA')}, s{S_XROW} offen offset:{32*i}", ('x', t))
        dma_chunk(g, V_WKV, 'wqkv', S_WCOL, t * 64 * 3072, t * SLOT, ('kv', t))
    g.stamp("issued")
    rdB_base(g, V_B0, T)
    g.e(f"v_xor_b32 v{V_B1}, 64, v{V_B0}")
    g.e(f"s_lshl_b32 s{S_T2}, s{S_SEL0}, 6")
    g.e(f"v_xor_b32 v{V_BW}, s{S_T2}, v{V_B0}")
    g.e(f"s_lshl_b32 s{S_T2}, s{S_SEL1}, 13")
    g.e(f"v_add_u32 v{V_BW}, s{S_T2}, v{V_BW}")
    rdA_base(g, V_RA, T)
    for kk in range(1, 4): g.e(f"v_xor_b32 v{V_RA+kk}, {32*kk}, v{V_RA}")
    g.e(f"v_and_b32 v{T}, 31, v{V_LANE}")
    g.e(f"v_lshlrev_b32 v{V_ST}, 11, v{T}")
    g.e(f"v_lshrrev_b32 v{T+1}, 5, v{V_LANE}")
    g.e(f"v_lshl_add_u32 v{V_ST}, v{T+1}, 4, v{V_ST}")
    g.e(f"v_and_b32 v{T+2}, 15, v{V_LANE}")
    g.e(f"v_lshlrev_b32 v{T+2}, 1, v{T+2}")
    g.e(f"v_lshl_add_u32 v{T+2}, v{T+1}, 7, v{T+2}")
    g.e(f"v_bfe_u32 v{T+3}, v{V_LANE}, 4, 1")
    g.e(f"v_lshl_add_u32 v{T+2}, v{T+3}, 9, v{T+2}")
    g.e(f"s_lshl_b32 s{S_T2}, s{S_G}, 10")
    for i in range(8):
        off = (8 * (i >> 2) + (i & 3)) * 32
        g.vmem(f"buffer_load_ushort v{X + i}, v{T+2}, {srd('wphi')}, s{S_T2} offen offset:{off}", 'wphi')
    g.e(f"v_lshlrev_b32 v{T+4}, 2, v{T+1}")
    g.e(f"v_sub_u32 v{T+4}, v{T}, v{T+4}")
    g.e(f"s_mov_b32 s{S_T0}, 0x3f80")
    g.e(f"s_mov_b32 s{S_T1}, 0x3f800000")
    g.e(f"v_mov_b32 v{T+5}, s{S_T0}")
    g.e(f"v_mov_b32 v{T+6}, s{S_T1}")
    for sgn in range(2):
        for j in range(4):
            c = [0, 2, 8, 10][j] + 16 * sgn
            d = V_SEL + 4 * sgn + j
            g.e(f"v_cmp_eq_u32 vcc, {c}, v{T+4}")
            g.e(f"v_cndmask_b32 v{d}, 0, v{T+5}, vcc")
            g.e(f"v_cmp_eq_u32 vcc, {c+1}, v{T+4}")
            g.e(f"v_cndmask_b32 v{d}, v{d}, v{T+6}, vcc")
    g.e(f"v_min_u32 v{T+4}, 16, v{T}")
    g.e(f"v_subrev_u32 v{T+5}, 16, v{T}")
    g.e(f"v_cmp_le_u32 vcc, 16, v{T}")
    g.e(f"v_cndmask_b32 v{T+5}, 16, v{T+5}, vcc")
    g.e(f"s_cmp_eq_u32 s{S_SEL1}, 0")
    g.e("s_cselect_b64 vcc, -1, 0")
    g.e(f"v_cndmask_b32 v{T+6}, v{T+5}, v{T+4}, vcc")
    g.e(f"v_lshlrev_b32 v{V_KL}, 6, v{T+6}")
    g.e(f"v_lshl_add_u32 v{V_KL}, v{T+1}, 5, v{V_KL}")
    g.e(f"v_cmp_ge_u32 vcc, 16, v{T}")
    g.e(f"v_cndmask_b32 v{T+4}, 0, 1, vcc")
    g.e(f"v_cmp_le_u32 vcc, 16, v{T}")
    g.e(f"v_cndmask_b32 v{T+5}, 0, 1, vcc")
    g.e(f"v_cmp_eq_u32 vcc, 0, v{T}")
    g.e(f"v_cndmask_b32 v{T+5}, v{T+5}, 1, vcc")
    g.e(f"s_cmp_eq_u32 s{S_SEL1}, 0")
    g.e("s_cselect_b64 vcc, -1, 0")
    g.e(f"v_cndmask_b32 v{T+4}, v{T+5}, v{T+4}, vcc")
    g.e(f"v_cmp_eq_u32 vcc, 1, v{T+4}")
    g.e(f"v_bfrev_b32 v{T+5}, 1")
    g.e(f"v_cndmask_b32 v{V_KS}, v{T+5}, v{V_KL}, vcc")
    g.e(f"v_and_b32 v{V_FL}, 15, v{V_LANE}")
    g.e(f"v_lshlrev_b32 v{V_FL}, 2, v{V_FL}")
    g.e(f"s_mul_i32 s{S_T0}, s{S_SEL1}, 1088")
    g.e(f"s_lshl_b32 s{S_T1}, s{S_SEL0}, 4")
    g.e(f"s_add_u32 s{S_T0}, s{S_T0}, s{S_T1}")
    g.e(f"s_mul_i32 s{S_T1}, s{S_G}, {16*2176}")
    g.e(f"s_add_u32 s{S_KVR}, s{S_T0}, s{S_T1}")
    g.e(f"s_add_u32 s{S_KVR}, s{S_KVR}, {WS_KVP}")
    g.e(f"s_mul_i32 s{S_T1}, s{S_RB}, 2176")
    g.e(f"s_add_u32 s{S_KVW}, s{S_KVR}, s{S_T1}")
    g.e(f"s_lshl_b32 s{S_T0}, s{S_G}, 2")
    g.e(f"s_add_u32 s{S_T0}, s{S_T0}, s{S_W}")
    g.e(f"s_lshl_b32 s{S_T0}, s{S_T0}, 6")
    g.e(f"s_add_u32 s{S_FKR}, s{S_T0}, {WS_FKV}")
    g.e(f"s_lshl_b32 s{S_T1}, s{S_RB}, 2")
    g.e(f"s_add_u32 s{S_FKW}, s{S_FKR}, s{S_T1}")
    g.e(f"s_lshl_b32 s{S_T0}, s{S_RB}, 2")
    g.e(f"s_add_u32 s{S_T0}, s{S_T0}, s{S_W}")
    g.e(f"s_lshl_b32 s{S_T0}, s{S_T0}, 6")
    g.e(f"s_lshl_b32 s{S_T1}, s{S_G}, 2")
    g.e(f"s_add_u32 s{S_FOW}, s{S_T0}, s{S_T1}")
    g.e(f"s_add_u32 s{S_FOW}, s{S_FOW}, {WS_FO}")
    g.e(f"s_lshr_b32 s{S_T2}, s{S_G}, 2")
    g.e(f"s_lshl_b32 s{S_T0}, s{S_RB}, 2")
    g.e(f"s_add_u32 s{S_T0}, s{S_T0}, s{S_T2}")
    g.e(f"s_lshl_b32 s{S_FOR}, s{S_T0}, 6")
    g.e(f"s_add_u32 s{S_FOR}, s{S_FOR}, {WS_FO}")
    g.e(f"s_lshl_b32 s{S_OR}, s{S_T0}, 15")
    g.e(f"s_add_u32 s{S_OR}, s{S_OR}, {WS_O}")
    g.e(f"s_lshl_b32 s{S_OUT}, s{S_T0}, 16")
    g.e(f"s_and_b32 s{S_T1}, s{S_G}, 3")
    g.e(f"s_lshl_b32 s{S_WOC}, s{S_T1}, 8")
    g.e(f"s_add_u32 s{S_OUT}, s{S_OUT}, s{S_WOC}")
    g.e(f"s_lshl_b32 s{S_T1}, s{S_W}, 6")
    g.e(f"s_add_u32 s{S_OUT}, s{S_OUT}, s{S_T1}")
    g.e(f"s_add_u32 s{S_OW}, s{S_XROW}, s{S_WCOL}")
    g.e(f"s_add_u32 s{S_OW}, s{S_OW}, {WS_O}")
    g.wait_vm('wphi')
    for j in range(4): g.e(f"v_lshl_or_b32 v{X+j}, v{X+2*j+1}, 16, v{X+2*j}")
    g.e(f"v_cmp_gt_u32 vcc, 16, v{T}")
    for j in range(4):
        g.e(f"v_cndmask_b32 v{V_WP+j}, 0, v{X+j}, vcc")
        g.e(f"v_cndmask_b32 v{V_WP+4+j}, v{X+j}, 0, vcc")
    g.stamp("consts")

    def q_chunk(u): dma_chunk(g, V_WQ, 'wqkv', S_WCOL, u * 128 * 3072, u * SLOT, ('q', u))
    def wo_chunk(c, slot):
        kb, half = c >> 1, c & 1
        dma_chunk(g, V_WO, 'wo', S_WOC, kb * 64 * 1024 + half * 128, slot * SLOT, ('wo', c))

    for t in range(8):
        g.wait_vm([('kv', t), ('x', t)])
        g.e("s_barrier")
        if 1 <= t <= 4: q_chunk(t - 1)
        for kk in range(4):
            for s in rB('v', FR + 8 * kk, V_B0, t * SLOT + kk * 2048): g.e(s)
            for s in rB('v', FR + 8 * kk + 4, V_B1, t * SLOT + kk * 2048): g.e(s)
        for kk in range(4):
            g.e(f"s_waitcnt lgkmcnt({12 - 4*kk})")
            first = (t == 0 and kk == 0)
            xf = A(4 * (4 * t + kk))
            g.e(mfma(ACC0, V(FR + 8 * kk), xf, first))
            g.e(mfma(ACC1, xf, V(FR + 8 * kk + 4), first))
        g.stamp(f"kv{t}")

    def feature_map(acc, PK, PH, tmp):
        kb = tmp
        for j in range(8): g.e(f"v_cvt_pk_bf16_f32 v{kb+j}, v{acc+2*j}, v{acc+2*j+1}")
        g.e(mfma(PK, V(V_WP), V(kb), True))
        g.e(mfma(PK, V(V_WP + 4), V(kb + 4), False))
        L2E = S_T3
        g.e(f"s_mov_b32 s{L2E}, 0x3fb8aa3b")
        mx = tmp + 8
        for hs in range(2):
            p = PK + 8 * hs
            a, b = mx + 4 * hs, mx + 4 * hs + 1
            g.e(f"v_max3_f32 v{a}, v{p}, v{p+1}, v{p+2}")
            g.e(f"v_min3_f32 v{b}, v{p}, v{p+1}, v{p+2}")
            g.e(f"v_max3_f32 v{a}, v{a}, v{p+3}, v{p+4}")
            g.e(f"v_min3_f32 v{b}, v{b}, v{p+3}, v{p+4}")
            g.e(f"v_max3_f32 v{a}, v{a}, v{p+5}, v{p+6}")
            g.e(f"v_min3_f32 v{b}, v{b}, v{p+5}, v{p+6}")
            g.e(f"v_max_f32 v{a}, v{a}, v{p+7}")
            g.e(f"v_min_f32 v{b}, v{b}, v{p+7}")
        for hs in range(2):
            a, b = mx + 4 * hs, mx + 4 * hs + 1
            g.e(f"v_mov_b32 v{a+2}, v{a}")
            g.e(f"v_mov_b32 v{b+2}, v{b}")
        for hs in range(2):
            a, b = mx + 4 * hs, mx + 4 * hs + 1
            g.e(f"v_permlane32_swap_b32 v{a}, v{a+2}")
            g.e(f"v_permlane32_swap_b32 v{b}, v{b+2}")
        for hs in range(2):
            a, b = mx + 4 * hs, mx + 4 * hs + 1
            g.e(f"v_max_f32 v{a}, v{a}, v{a+2}")
            g.e(f"v_min_f32 v{b}, v{b}, v{b+2}")
            g.e(f"v_mul_f32 v{a}, s{L2E}, v{a}")
            g.e(f"v_mul_f32 v{b}, s{L2E}, v{b}")
        E = tmp + 16
        for hs in range(2):
            p = PK + 8 * hs
            a, b = mx + 4 * hs, mx + 4 * hs + 1
            for i in range(8):
                g.e(f"v_fma_f32 v{E+i}, -v{p+i}, s{L2E}, v{b}")
                g.e(f"v_fma_f32 v{p+i}, v{p+i}, s{L2E}, -v{a}")
            for i in range(8):
                g.e(f"v_exp_f32 v{E+i}, v{E+i}")
                g.e(f"v_exp_f32 v{p+i}, v{p+i}")
            sp_, sm = a, b
            g.e(f"v_add_f32 v{sp_}, v{p}, v{p+1}")
            g.e(f"v_add_f32 v{sm}, v{E}, v{E+1}")
            for i in range(2, 8):
                g.e(f"v_add_f32 v{sp_}, v{sp_}, v{p+i}")
                g.e(f"v_add_f32 v{sm}, v{sm}, v{E+i}")
            g.e(f"v_mov_b32 v{sp_+2}, v{sp_}")
            g.e(f"v_mov_b32 v{sm+2}, v{sm}")
            g.e(f"v_permlane32_swap_b32 v{sp_}, v{sp_+2}")
            g.e(f"v_permlane32_swap_b32 v{sm}, v{sm+2}")
            g.e(f"v_add_f32 v{sp_}, v{sp_}, v{sp_+2}")
            g.e(f"v_add_f32 v{sm}, v{sm}, v{sm+2}")
            g.e(f"v_rcp_f32 v{sp_}, v{sp_}")
            g.e(f"v_rcp_f32 v{sm}, v{sm}")
            for i in range(8):
                g.e(f"v_mul_f32 v{p+i}, v{p+i}, v{sp_}")
                g.e(f"v_mul_f32 v{E+i}, v{E+i}, v{sm}")
            for j in range(4):
                g.e(f"v_cvt_pk_bf16_f32 v{PH+8*hs+j}, v{p+2*j}, v{p+2*j+1}")
                g.e(f"v_cvt_pk_bf16_f32 v{PH+8*hs+4+j}, v{E+2*j}, v{E+2*j+1}")

    feature_map(ACC0, FR, FR + 16, ACC0 + 0) if False else None
    KB = X
    def feature_map2(acc, PK, PH):
        kb, mx, E = X, T, acc
        for j in range(8): g.e(f"v_cvt_pk_bf16_f32 v{kb+j}, v{acc+2*j}, v{acc+2*j+1}")
        g.e(mfma(PK, V(V_WP), V(kb), True))
        g.e(mfma(PK, V(V_WP + 4), V(kb + 4), False))
        L2E = S_T3
        g.e(f"s_mov_b32 s{L2E}, 0x3fb8aa3b")
        for hs in range(2):
            p = PK + 8 * hs
            a, b = mx + 4 * hs, mx + 4 * hs + 1
            g.e(f"v_max3_f32 v{a}, v{p}, v{p+1}, v{p+2}")
            g.e(f"v_min3_f32 v{b}, v{p}, v{p+1}, v{p+2}")
            g.e(f"v_max3_f32 v{a}, v{a}, v{p+3}, v{p+4}")
            g.e(f"v_min3_f32 v{b}, v{b}, v{p+3}, v{p+4}")
            g.e(f"v_max3_f32 v{a}, v{a}, v{p+5}, v{p+6}")
            g.e(f"v_min3_f32 v{b}, v{b}, v{p+5}, v{p+6}")
            g.e(f"v_max_f32 v{a}, v{a}, v{p+7}")
            g.e(f"v_min_f32 v{b}, v{b}, v{p+7}")
        for hs in range(2):
            a, b = mx + 4 * hs, mx + 4 * hs + 1
            g.e(f"v_mov_b32 v{a+2}, v{a}")
            g.e(f"v_mov_b32 v{b+2}, v{b}")
        for hs in range(2):
            a, b = mx + 4 * hs, mx + 4 * hs + 1
            g.e(f"v_permlane32_swap_b32 v{a}, v{a+2}")
            g.e(f"v_permlane32_swap_b32 v{b}, v{b+2}")
        for hs in range(2):
            a, b = mx + 4 * hs, mx + 4 * hs + 1
            g.e(f"v_max_f32 v{a}, v{a}, v{a+2}")
            g.e(f"v_min_f32 v{b}, v{b}, v{b+2}")
            g.e(f"v_mul_f32 v{a}, s{L2E}, v{a}")
            g.e(f"v_mul_f32 v{b}, s{L2E}, v{b}")
        for hs in range(2):
            p = PK + 8 * hs
            Eh = E + 8 * hs
            a, b = mx + 4 * hs, mx + 4 * hs + 1
            for i in range(8):
                g.e(f"v_fma_f32 v{Eh+i}, -v{p+i}, s{L2E}, v{b}")
                g.e(f"v_fma_f32 v{p+i}, v{p+i}, s{L2E}, -v{a}")
        for hs in range(2):
            p = PK + 8 * hs
            Eh = E + 8 * hs
            for i in range(8):
                g.e(f"v_exp_f32 v{Eh+i}, v{Eh+i}")
                g.e(f"v_exp_f32 v{p+i}, v{p+i}")
        for hs in range(2):
            p = PK + 8 * hs
            Eh = E + 8 * hs
            sp_, sm = mx + 4 * hs, mx + 4 * hs + 1
            g.e(f"v_add_f32 v{sp_}, v{p}, v{p+1}")
            g.e(f"v_add_f32 v{sm}, v{Eh}, v{Eh+1}")
            for i in range(2, 8):
                g.e(f"v_add_f32 v{sp_}, v{sp_}, v{p+i}")
                g.e(f"v_add_f32 v{sm}, v{sm}, v{Eh+i}")
            g.e(f"v_mov_b32 v{sp_+2}, v{sp_}")
            g.e(f"v_mov_b32 v{sm+2}, v{sm}")
        for hs in range(2):
            sp_, sm = mx + 4 * hs, mx + 4 * hs + 1
            g.e(f"v_permlane32_swap_b32 v{sp_}, v{sp_+2}")
            g.e(f"v_permlane32_swap_b32 v{sm}, v{sm+2}")
        for hs in range(2):
            sp_, sm = mx + 4 * hs, mx + 4 * hs + 1
            g.e(f"v_add_f32 v{sp_}, v{sp_}, v{sp_+2}")
            g.e(f"v_add_f32 v{sm}, v{sm}, v{sm+2}")
            g.e(f"v_rcp_f32 v{sp_}, v{sp_}")
            g.e(f"v_rcp_f32 v{sm}, v{sm}")
        for hs in range(2):
            p = PK + 8 * hs
            Eh = E + 8 * hs
            sp_, sm = mx + 4 * hs, mx + 4 * hs + 1
            for i in range(8):
                g.e(f"v_mul_f32 v{p+i}, v{p+i}, v{sp_}")
                g.e(f"v_mul_f32 v{Eh+i}, v{Eh+i}, v{sm}")
            for j in range(4):
                g.e(f"v_cvt_pk_bf16_f32 v{PH+8*hs+j}, v{p+2*j}, v{p+2*j+1}")
                g.e(f"v_cvt_pk_bf16_f32 v{PH+8*hs+4+j}, v{Eh+2*j}, v{Eh+2*j+1}")

    PK, PH = FR, FR + 16
    feature_map2(ACC0, PK, PH)
    g.stamp("fmK")
    XT = [ACC0, PK]
    for hs in range(2):
        g.e(mfma(XT[hs], V(PH + 8 * hs), V(V_SEL), True))
        g.e(mfma(XT[hs], V(PH + 8 * hs + 4), V(V_SEL + 4), False))
    for j in range(8): g.e(f"v_cvt_pk_bf16_f32 v{X+j}, v{ACC1+2*j}, v{ACC1+2*j+1}")
    g.e(f"s_mov_b32 s{S_T0}, 0x3f803f80")
    g.e(f"v_mov_b32 v{T}, s{S_T0}")
    g.e(f"v_and_b32 v{T+1}, 16, v{V_LANE}")
    g.e(f"v_cmp_eq_u32 vcc, 0, v{T+1}")
    for j in range(8):
        g.e(f"v_cndmask_b32 v{ACC1+j}, v{T}, v{X+j}, vcc")
        g.e(f"v_cndmask_b32 v{ACC1+8+j}, v{X+j}, v{T}, vcc")
    for hs in range(2):
        for j in range(8):
            g.e(f"v_cvt_pk_bf16_f32 v{PH+8*hs+j}, v{XT[hs]+2*j}, v{XT[hs]+2*j+1}")
    KVT = [ACC0, PK]
    for hs in range(2):
        g.e(mfma(KVT[hs], V(PH + 8 * hs), V(ACC1 + 8 * hs), True))
        g.e(mfma(KVT[hs], V(PH + 8 * hs + 4), V(ACC1 + 8 * hs + 4), False))
    RED = 4 * SLOT
    g.e(f"v_lshlrev_b32 v{T}, 4, v{V_LANE}")
    g.e(f"s_lshl_b32 s{S_T0}, s{S_W}, 13")
    g.e(f"v_add_u32 v{T+1}, s{S_T0}, v{T}")
    g.e(f"s_lshl_b32 s{S_T0}, s{S_W}, 11")
    g.e(f"v_add_u32 v{T+2}, s{S_T0}, v{T}")
    g.e("s_barrier")
    for hs in range(2):
        for q in range(4):
            g.e(f"ds_write_b128 v{T+1}, {V(KVT[hs]+4*q)} offset:{RED + (hs*4+q)*1024}")
    g.e("s_waitcnt lgkmcnt(0)")
    g.e("s_barrier")
    for sw in range(4):
        for q in range(2):
            g.e(f"ds_read_b128 {V(PH + 8*sw + 4*q)}, v{T+2} offset:{RED + sw*8192 + q*1024}") if sw < 2 else \
            g.e(f"ds_read_b128 {V(ACC1 + 8*(sw-2) + 4*q)}, v{T+2} offset:{RED + sw*8192 + q*1024}")
    get_nonce_early = True
    g.e("s_waitcnt lgkmcnt(0)")
    for i in range(8):
        g.e(f"v_add_f32 v{PH+i}, v{PH+i}, v{PH+8+i}")
        g.e(f"v_add_f32 v{ACC1+i}, v{ACC1+i}, v{ACC1+8+i}")
    for i in range(8): g.e(f"v_add_f32 v{PH+i}, v{PH+i}, v{ACC1+i}")
    for j in range(4): g.e(f"v_cvt_pk_bf16_f32 v{X+j}, v{PH+2*j}, v{PH+2*j+1}")
    g.vmem(f"buffer_store_dwordx4 {V(X)}, v{V_KS}, {srd('ws')}, s{S_KVW} offen sc1", 'kvst')
    g.stamp("kvst")
    get_nonce(g, V_NON, T)
    publish(g, V_NON, T, S_FKW)
    g.stamp("pubKV")
    g.e("s_barrier")
    for c in range(4): wo_chunk(c, 4 + c)
    for u in range(4):
        g.wait_vm(('q', u))
        g.e("s_barrier")
        if u >= 1: wo_chunk(4 + u - 1, u - 1)
        for cn in range(2):
            for kk in range(4):
                for s in rB('v', FR + 16 * cn + 4 * kk, V_B1 if cn else V_B0, u * SLOT + kk * 2048): g.e(s)
        for cn in range(2):
            for kk in range(4):
                n = 4 * cn + kk
                g.e(f"s_waitcnt lgkmcnt({14 - 2*n})")
                g.e(mfma(ACC0, V(FR + 16 * cn + 4 * kk), A(4 * (8 * u + 4 * cn + kk)), u == 0 and n == 0))
    g.e("s_barrier")
    wo_chunk(7, 3)
    g.stamp("qgemm")
    PHQ = ACC1
    feature_map2(ACC0, FR, PHQ)
    g.stamp("fmQ")
    def wo_read(kb, slot_even):
        for kk in range(4):
            for s in rB('a', 16 * kb + 4 * kk, V_BW, slot_even * SLOT + kk * 2048): g.e(s)
    for kb in range(4):
        g.wait_vm([('wo', 2 * kb), ('wo', 2 * kb + 1)])
        g.e("s_barrier")
        wo_read(kb, (4 + 2 * kb) % 8)
    g.e("s_waitcnt lgkmcnt(0)")
    g.e("s_barrier")
    g.stamp("wo0")
    poll(g, V_FL, T, V_NON, S_FKR, "kv")
    g.stamp("pollKV")
    PB = 80
    dsts = [48 + 4 * i for i in range(4)] + [80 + 4 * i for i in range(8)] + [112, 116, 120] + [T]
    for r in range(16):
        g.e(f"s_add_u32 s{S_T4}, s{S_KVR}, {r*2176}")
        g.vmem(f"buffer_load_dwordx4 {V(dsts[r])}, v{V_KL}, {srd('ws')}, s{S_T4} offen sc1", ('p', r))
    for c in range(8, 16): wo_chunk(c, c - 8)
    SUM = T + 4
    SUM = V_SEL
    g.e(f"s_mov_b32 s{S_T0}, 0x3f80")
    g.e(f"s_mov_b32 s{S_T1}, 0x3f800000")
    for i in range(8): g.e(f"v_mov_b32 v{SUM+i}, 0")
    for r in range(16):
        g.wait_vm(('p', r))
        for j in range(4):
            g.e(f"v_dot2_f32_bf16 v{SUM+2*j}, v{dsts[r]+j}, s{S_T0}, v{SUM+2*j}")
            g.e(f"v_dot2_f32_bf16 v{SUM+2*j+1}, v{dsts[r]+j}, s{S_T1}, v{SUM+2*j+1}")
    for j in range(4): g.e(f"v_cvt_pk_bf16_f32 v{T+j}, v{SUM+2*j}, v{SUM+2*j+1}")
    SCR = 8 * SLOT
    g.e(f"v_lshlrev_b32 v{T+4}, 4, v{V_LANE}")
    g.e(f"v_add_u32 v{T+4}, {SCR}, v{T+4}")
    g.e(f"v_add_u32 v{T+5}, s{S_WLDS}, v{T+4}")
    g.e(f"ds_write_b128 v{T+5}, {V(T)}")
    g.e("s_waitcnt lgkmcnt(0)")
    g.e("s_barrier")
    for u in range(4): g.e(f"ds_read_b128 {V(FR+4*u)}, v{T+4} offset:{u*1024}")
    g.e("s_waitcnt lgkmcnt(0)")
    g.stamp("kvsum")
    TT = [ACC0, FR + 16]
    for hs in range(2):
        g.e(mfma(TT[hs], V(FR + 8 * hs), V(PHQ + 8 * hs), True))
        g.e(mfma(TT[hs], V(FR + 8 * hs + 4), V(PHQ + 8 * hs + 4), False))
    g.e(f"s_mov_b32 s{S_T0}, 0x358637bd")
    g.e(f"v_add_f32 v{T}, s{S_T0}, v{TT[0]+8}")
    g.e(f"v_add_f32 v{T+1}, s{S_T0}, v{TT[1]}")
    g.e(f"v_rcp_f32 v{T}, v{T}")
    g.e(f"v_rcp_f32 v{T+1}, v{T+1}")
    for i in range(8):
        g.e(f"v_mul_f32 v{TT[0]+i}, v{TT[0]+i}, v{T}")
        g.e(f"v_mul_f32 v{TT[0]+8+i}, v{TT[1]+8+i}, v{T+1}")
    pack_store_tile(g, TT[0], X, V_X, 'ws', S_OW, 0, sc1=True, tag='ost')
    g.wait_vm('ost')
    publish(g, V_NON, T, S_FOW)
    g.stamp("pubO")
    for kb in range(4, 8):
        g.wait_vm([('wo', 2 * kb), ('wo', 2 * kb + 1)])
        g.e("s_barrier")
        wo_read(kb, (2 * kb - 8) % 8)
    g.e("s_waitcnt lgkmcnt(0)")
    g.e("s_barrier")
    g.stamp("wo1")
    poll(g, V_FL, T, V_NON, S_FOR, "o")
    g.stamp("pollO")
    for c in range(8):
        g.e(f"s_add_u32 s{S_T4}, s{S_OR}, {c*128}")
        dma(g, V_OD, 'ws', S_T4, c * 4096, ('o', c), sc1=True)
    for c in range(8):
        g.wait_vm(('o', c))
        g.e("s_barrier")
        st = FR + 16 * (c & 1)
        for kk in range(4): g.e(f"ds_read_b128 {V(st + 4*kk)}, v{V_RA+kk} offset:{c*4096}")
        for kk in range(4):
            g.e(f"s_waitcnt lgkmcnt({3-kk})")
            g.e(mfma(ACC0, A(16 * c + 4 * kk), V(st + 4 * kk), c == 0 and kk == 0))
    pack_store_tile(g, ACC0, X, V_ST, 'out', S_OUT, 0)
    g.stamp("done")
    g.stamp_flush("A")

def srd_setup(g, names):
    g.e("s_waitcnt lgkmcnt(0)")
    for n in names:
        i = KARG.index(n)
        b = SRD[n]
        g.e(f"s_mov_b32 s{b}, s{S_KARG+2*i}")
        g.e(f"s_mov_b32 s{b+1}, s{S_KARG+2*i+1}")
        g.e(f"s_mov_b32 s{b+2}, {SIZES[n]}")
        g.e(f"s_mov_b32 s{b+3}, 0x00020000")

def role_B(g):
    g.role = "B"; g.stampnames = []; g.nstamp = 1
    RING = 9
    V_XB, V_H, V_GB, V_C = 2, 4, 6, 8
    V_A1, V_A0 = 10, 18
    V_B0 = 26
    V_GS, V_NON, V_FL, V_YS = 27, 28, 29, 30
    V_W32 = 32
    V_TW = 31
    T = 48
    ACCA, ACCB = 64, 80
    FR = 96
    S_SP, S_EB, S_XR, S_HR, S_GW, S_FW, S_FR_, S_GR, S_YO, S_S2 = range(S_R, S_R + 10)
    g.e(f"s_sub_u32 s{S_T5}, s2, 256")
    g.e(f"s_and_b32 s{S_T0}, s{S_T5}, 7")
    g.e(f"s_lshr_b32 s{S_T1}, s{S_T5}, 3")
    g.e(f"s_lshr_b32 s{S_T2}, s{S_T0}, 1")
    g.e(f"s_lshl_b32 s{S_T2}, s{S_T2}, 3")
    g.e(f"s_lshr_b32 s{S_T3}, s{S_T1}, 2")
    g.e(f"s_add_u32 s{S_SP}, s{S_T2}, s{S_T3}")
    g.e(f"s_and_b32 s{S_T2}, s{S_T0}, 1")
    g.e(f"s_lshl_b32 s{S_T2}, s{S_T2}, 2")
    g.e(f"s_and_b32 s{S_T3}, s{S_T1}, 3")
    g.e(f"s_add_u32 s{S_EB}, s{S_T2}, s{S_T3}")
    g.e(f"s_lshl_b32 s{S_XR}, s{S_SP}, 11")
    g.e(f"s_lshl_b32 s{S_HR}, s{S_EB}, 16")
    g.e(f"s_lshl_b32 s{S_S2}, s{S_SP}, 1")
    g.e(f"s_add_u32 s{S_S2}, s{S_S2}, s{S_SEL1}")
    g.e(f"s_lshl_b32 s{S_T2}, s{S_T1}, 3")
    g.e(f"s_add_u32 s{S_T2}, s{S_T2}, s{S_T0}")
    g.e(f"s_lshl_b32 s{S_GR}, s{S_T2}, 14")
    g.e(f"s_add_u32 s{S_GR}, s{S_GR}, {WS_G}")
    g.e(f"s_lshl_b32 s{S_FR_}, s{S_T0}, 7")
    g.e(f"s_add_u32 s{S_FR_}, s{S_FR_}, {WS_FB}")
    g.e(f"s_lshl_b32 s{S_T2}, s{S_SEL1}, 10")
    g.e(f"s_add_u32 s{S_T2}, s{S_T2}, s{S_T1}")
    g.e(f"s_lshl_b32 s{S_YO}, s{S_T2}, 11")
    g.e(f"s_lshl_b32 s{S_T2}, s{S_T0}, 7")
    g.e(f"s_add_u32 s{S_YO}, s{S_YO}, s{S_T2}")
    g.e(f"s_lshl_b32 s{S_T2}, s{S_SEL0}, 6")
    g.e(f"s_add_u32 s{S_YO}, s{S_YO}, s{S_T2}")
    g.e(f"s_add_u32 s{S_YO}, s{S_YO}, 1024")
    g.e(f"s_lshl_b32 s{S_GW}, s{S_EB}, 14")
    g.e(f"s_lshl_b32 s{S_T2}, s{S_S2}, 7")
    g.e(f"s_add_u32 s{S_GW}, s{S_GW}, s{S_T2}")
    g.e(f"s_lshl_b32 s{S_T2}, s{S_SEL0}, 6")
    g.e(f"s_add_u32 s{S_GW}, s{S_GW}, s{S_T2}")
    g.e(f"s_add_u32 s{S_GW}, s{S_GW}, {WS_G}")
    g.e(f"s_lshl_b32 s{S_FW}, s{S_EB}, 7")
    g.e(f"s_lshl_b32 s{S_T2}, s{S_SP}, 2")
    g.e(f"s_add_u32 s{S_FW}, s{S_FW}, s{S_T2}")
    g.e(f"s_add_u32 s{S_FW}, s{S_FW}, {WS_FB}")
    lane_consts_common(g, T)
    g.e(f"v_lshl_add_u32 v{V_XB}, v{T}, 16, v{T+3}")
    g.e(f"v_add_u32 v{V_XB+1}, 1024, v{V_XB}")
    g.e(f"v_lshl_add_u32 v{V_H}, v{T}, 10, v{T+3}")
    g.e(f"v_add_u32 v{V_H+1}, {32*1024}, v{V_H}")
    g.e(f"v_lshlrev_b32 v{T+4}, 4, v{T+2}")
    g.e(f"v_lshl_add_u32 v{V_GB}, v{T}, 7, v{T+4}")
    g.e(f"v_add_u32 v{V_GB+1}, {32*128}, v{V_GB}")
    g.e(f"v_lshl_add_u32 v{V_C}, v{T}, 17, v{T+3}")
    g.e(f"v_add_u32 v{V_C+1}, {32*131072}, v{V_C}")
    srd_setup(g, ['xB', 'Cr', 'Ci', 'Hr', 'Hi', 'out', 'dbg', 'ws'])
    seq = []
    for t in range(8):
        seq += [(V_XB, 'xB', S_XR, t * 128, ('x', t)), (V_H, 'Hr', S_HR, t * 128, ('hr', t)), (V_H, 'Hi', S_HR, t * 128, ('hi', t))]
    g.e(f"s_mov_b32 s{S_T5}, 0")
    seq += [(V_C, 'Cr', S_T5, 0, ('c', 0)), (V_C, 'Ci', S_T5, 0, ('c', 1))]
    ptr = [0]
    def issue_upto(lim):
        while ptr[0] < min(lim, len(seq)):
            vo, sn, sb, imm, tag = seq[ptr[0]]
            dma_chunk(g, vo, sn, sb, imm, (ptr[0] % RING) * SLOT, tag)
            ptr[0] += 1
    DEPTH0 = optv('bdepth', 9)
    issue_upto(DEPTH0)
    g.stamp("issued")
    rdA_base(g, T, T + 1)
    g.e(f"s_lshl_b32 s{S_T2}, s{S_SEL1}, 12")
    g.e(f"s_lshl_b32 s{S_T3}, s{S_SEL0}, 12")
    for kk in range(4):
        g.e(f"v_xor_b32 v{T+1}, {kk*32}, v{T}")
        g.e(f"v_add_u32 v{V_A1+kk}, s{S_T2}, v{T+1}")
        g.e(f"v_add_u32 v{V_A1+4+kk}, 0x10000, v{V_A1+kk}")
        g.e(f"v_add_u32 v{V_A0+kk}, s{S_T3}, v{T+1}")
        g.e(f"v_add_u32 v{V_A0+4+kk}, 0x10000, v{V_A0+kk}")
    rdB_base(g, V_B0, T)
    g.e(f"s_lshl_b32 s{S_T2}, s{S_SEL0}, 6")
    g.e(f"v_xor_b32 v{V_B0}, s{S_T2}, v{V_B0}")
    g.e(f"v_and_b32 v{T}, 31, v{V_LANE}")
    g.e(f"v_lshrrev_b32 v{T+1}, 5, v{V_LANE}")
    g.e(f"v_lshlrev_b32 v{T+2}, 18, v{T}")
    g.e(f"v_lshl_add_u32 v{T+2}, v{T+1}, 3, v{T+2}")
    for mi, mn in enumerate(('Cr', 'Ci')):
        for ks in range(2):
            for q in range(2):
                d = V_W32 + 8 * mi + 4 * ks + 2 * q
                g.vmem(f"buffer_load_dwordx2 {V(d,2)}, v{T+2}, {srd(mn)}, 0 offen offset:{32*ks+16*q}", 'w32')
    g.e(f"v_lshlrev_b32 v{T+3}, 12, v{T}")
    g.e(f"s_lshl_b32 s{S_T2}, s{S_S2}, 1")
    g.vmem(f"buffer_load_ushort v{V_TW}, v{T+3}, {srd('Cr')}, s{S_T2} offen", 'w32')
    g.vmem(f"buffer_load_ushort v{V_FL}, v{T+3}, {srd('Ci')}, s{S_T2} offen", 'w32')
    g.e(f"v_lshlrev_b32 v{V_GS}, 17, v{T}")
    g.e(f"v_lshl_add_u32 v{V_GS}, v{T+1}, 4, v{V_GS}")
    g.e(f"v_lshlrev_b32 v{V_YS}, 16, v{T}")
    g.e(f"v_lshl_add_u32 v{V_YS}, v{T+1}, 4, v{V_YS}")
    def rA(dst, which, ci, kk):
        off = (ci % RING) * SLOT
        base = V_A1 if which else V_A0
        if off >= 65536: return f"ds_read_b128 {dst}, v{base+4+kk} offset:{off-65536}"
        return f"ds_read_b128 {dst}, v{base+kk} offset:{off}"
    for t in range(8):
        g.wait_vm([('x', t), ('hr', t), ('hi', t)])
        g.e("s_barrier")
        issue_upto(3 * t + RING)
        for kk in range(4):
            g.e(rA(A(12 * kk), 1, 3 * t, kk))
            g.e(rA(A(12 * kk + 4), 0, 3 * t + 1, kk))
            g.e(rA(A(12 * kk + 8), 0, 3 * t + 2, kk))
        for kk in range(4):
            g.e(f"s_waitcnt lgkmcnt({9 - 3*kk})")
            first = (t == 0 and kk == 0)
            g.e(mfma(ACCA, A(12 * kk), A(12 * kk + 4), first))
            g.e(mfma(ACCB, A(12 * kk), A(12 * kk + 8), first))
        g.stamp(f"g{t}")
    g.wait_vm('w32')
    V_TI = T + 15
    g.e(f"v_lshlrev_b32 v{V_TW}, 16, v{V_TW}")
    g.e(f"v_lshlrev_b32 v{V_TI}, 16, v{V_FL}")
    AB, BB, NB = 96, 104, 112
    for j in range(8):
        g.e(f"v_cvt_pk_bf16_f32 v{AB+j}, v{ACCA+2*j}, v{ACCA+2*j+1}")
        g.e(f"v_cvt_pk_bf16_f32 v{BB+j}, v{ACCB+2*j}, v{ACCB+2*j+1}")
        g.e(f"v_cvt_pk_bf16_f32 v{NB+j}, -v{ACCB+2*j}, -v{ACCB+2*j+1}")
    GR, GI = ACCA, ACCB
    CR, CI = V_W32, V_W32 + 8
    for ks in range(2):
        g.e(mfma(GR, V(AB + 4 * ks), V(CR + 4 * ks), ks == 0))
        g.e(mfma(GI, V(AB + 4 * ks), V(CI + 4 * ks), ks == 0))
    for ks in range(2):
        g.e(mfma(GR, V(NB + 4 * ks), V(CI + 4 * ks), False))
        g.e(mfma(GI, V(BB + 4 * ks), V(CR + 4 * ks), False))
    R2 = 96
    for i in range(16):
        g.e(f"v_mul_f32 v{R2+i}, v{GI+i}, v{V_TI}")
        g.e(f"v_mul_f32 v{GI+i}, v{GI+i}, v{V_TW}")
        g.e(f"v_fma_f32 v{R2+i}, v{GR+i}, v{V_TW}, -v{R2+i}")
        g.e(f"v_fma_f32 v{GI+i}, v{GR+i}, v{V_TI}, v{GI+i}")
    pack_store_tile(g, R2, T, V_GS, 'ws', S_GW, 0, sc1=True, tag='gst')
    g.e(f"s_add_u32 s{S_T4}, s{S_GW}, 8192")
    pack_store_tile(g, GI, 112, V_GS, 'ws', S_T4, 0, neg=True, sc1=True, tag='gst')
    g.stamp("gst")
    get_nonce(g, V_NON, T)
    g.e("s_barrier")
    g.e(f"s_cmp_lg_u32 s{S_W}, 0")
    g.e("s_cbranch_scc1 L_B_nopub")
    publish(g, V_NON, T, S_FW)
    g.label("L_B_nopub")
    g.stamp("pubG")
    g.e(f"v_and_b32 v{V_FL}, 31, v{V_LANE}")
    g.e(f"v_lshlrev_b32 v{V_FL}, 2, v{V_FL}")
    poll(g, V_FL, T, V_NON, S_FR_, "b")
    g.stamp("pollG")
    dma_chunk(g, V_GB, 'ws', S_GR, 0, 0 * SLOT, ('g', 0), sc1=True)
    dma_chunk(g, V_GB, 'ws', S_GR, 8192, 1 * SLOT, ('g', 1), sc1=True)
    for ri in range(2):
        g.wait_vm(('g', ri))
        g.e("s_barrier")
        for kk in range(4):
            for s in rB('a', 8 * kk, V_B0, ri * SLOT + kk * 2048): g.e(s)
            g.e(rA(A(8 * kk + 4), 1, 24 + ri, kk))
        for kk in range(4):
            g.e(f"s_waitcnt lgkmcnt({9 - 3*kk})")
            g.e(mfma(ACCA, A(8 * kk), A(8 * kk + 4), ri == 0 and kk == 0))
    pack_store_tile(g, ACCA, T, V_YS, 'out', S_YO, 0)
    g.stamp("done")
    g.stamp_flush("B")

def build(path):
    g = K()
    g.stampnames = []
    g.e("s_cmp_ge_u32 s2, 512")
    g.e("s_cbranch_scc1 L_end")
    g.e(f"s_load_dwordx16 s[{S_KARG}:{S_KARG+15}], s[0:1], 0")
    g.e(f"s_load_dwordx8 s[{S_KARG+16}:{S_KARG+23}], s[0:1], 64")
    if 'stamp' in OPT: g.e(f"v_mov_b32 v{V_STAMP}, 0")
    g.e(f"v_and_b32 v{V_LANE}, 63, v0")
    g.e(f"v_lshrrev_b32 v2, 6, v0")
    g.e(f"v_readfirstlane_b32 s{S_W}, v2")
    g.e(f"s_lshl_b32 s{S_WLDS}, s{S_W}, 10")
    g.e(f"s_and_b32 s{S_SEL0}, s{S_W}, 1")
    g.e(f"s_lshr_b32 s{S_SEL1}, s{S_W}, 1")
    g.stamp("start")
    g.e("s_cmp_ge_u32 s2, 256")
    g.e("s_cbranch_scc1 L_roleB")
    if 'noA' in OPT: g.e("s_branch L_end")
    role_A(g)
    namesA = g.stampnames
    g.e("s_endpgm")
    g.label("L_roleB")
    g.vm = []
    if 'noB' in OPT: g.e("s_branch L_end")
    role_B(g)
    namesB = ['start'] + g.stampnames
    g.label("L_end")
    g.e("s_endpgm")
    body = "\n".join(fix(g.lines)) + "\n"
    ref = open('concat_heads__linear_kernel_hedgehog__spectral_fnet__prompt.s.ref').read().split("\n")
    hdr = [l for l in ref if l.startswith(";") and "@launch" not in l and "Override launch" not in l and "grid=ceil" not in l][:13]
    out = "\n".join(l for l in hdr if l.startswith("; ")) + "\n"
    out += f"; @launch grid=(512,1,1) block=(256,1,1) lds={LDS_TOTAL}\n"
    if 'stamp' in OPT:
        out += f"; stampsA {' '.join(namesA)}\n; stampsB {' '.join(namesB)}\n"
    out += '.amdgcn_target "amdgcn-amd-amdhsa--gfx950"\n.text\n'
    out += f".globl {KNAME}\n.p2align 8\n.type {KNAME},@function\n{KNAME}:\n" + body
    out += f'''.section .rodata,"a"
.p2align 6
.amdhsa_kernel {KNAME}
  .amdhsa_next_free_vgpr 256
  .amdhsa_next_free_sgpr 102
  .amdhsa_accum_offset 128
  .amdhsa_group_segment_fixed_size 0
  .amdhsa_kernarg_size 96
  .amdhsa_user_sgpr_count 2
  .amdhsa_user_sgpr_kernarg_segment_ptr 1
  .amdhsa_system_sgpr_workgroup_id_x 1
.end_amdhsa_kernel
'''
    open(path, "w").write(out)

if __name__ == "__main__":
    build(sys.argv[1] if len(sys.argv) > 1 else "k2.s")
```

```python
import sys, os
sys.path.insert(0, 'gen')
from core import *
from haz import fix
OPT = set(os.environ.get('KOPT', '').split(','))
def optv(name, default):
    for o in OPT:
        if o.startswith(name + '='): return int(o[len(name)+1:])
    return default

SLOT = 8192
LDS_TOTAL = 81920
KNAME = "concat_heads__linear_kernel_hedgehog__spectral_fnet__prompt_kernel"

S_W = 3
S_T0, S_T1, S_T2, S_T3, S_T4, S_T5 = 4, 5, 6, 7, 8, 9
SRD = dict(xA=12, wqkv=16, wphi=20, wo=24, xB=28, Cr=32, Ci=36, Hr=40, Hi=44, out=48, dbg=52, ws=56)
SIZES = dict(xA=2048*512*2, wqkv=512*1536*2, wphi=32*16*16*2, wo=512*512*2, xB=2048*512*2,
             Cr=2048*2048*2, Ci=2048*2048*2, Hr=512*512*2, Hi=512*512*2, out=2048*1024*2, dbg=256, ws=16<<20)
KARG = ['xA', 'wqkv', 'wphi', 'wo', 'xB', 'Cr', 'Ci', 'Hr', 'Hi', 'out', 'dbg', 'ws']
S_WLDS = 60
S_R = 61
S_KARG = 72
S_SEL0 = 10; S_SEL1 = 11
def srd(n): b = SRD[n]; return f"s[{b}:{b+3}]"

WS_G = 0
WS_O = 4 << 20
WS_KVP = 6 << 20
WS_FKV = 7 << 20
WS_FO = WS_FKV + 4096
WS_FB = WS_FKV + 8192
WS_STAMP = 14 << 20

def A(lo, n=4): return f"a[{lo}:{lo+n-1}]"
def V(lo, n=4): return f"v[{lo}:{lo+n-1}]"
def mfma(d, a, b, first):
    return f"v_mfma_f32_32x32x16_bf16 {V(d,16)}, {a}, {b}, {'0' if first else V(d,16)}"

V_LANE = 1
V_STAMP = 127

class K(Gen):
    def __init__(self):
        super().__init__()
        self.nstamp = 0
    def stamp(self, name=""):
        if 'stamp' not in OPT: return
        i = self.nstamp; self.nstamp += 1
        assert i < 63
        self.e(f"s_memrealtime s[96:97]\ns_waitcnt lgkmcnt(0)\nv_writelane_b32 v{V_STAMP}, s96, {i}")
        self.stampnames.append(name)
    def stamp_flush(self, role):
        if 'stamp' not in OPT: return
        self.e("s_memrealtime s[96:97]\ns_waitcnt lgkmcnt(0)")
        self.e(f"v_writelane_b32 v{V_STAMP}, s96, 63")
        self.e(f"s_lshl_b32 s{S_T0}, s2, 10\ns_lshl_b32 s{S_T1}, s{S_W}, 8\ns_add_u32 s{S_T0}, s{S_T0}, s{S_T1}")
        self.e(f"s_add_u32 s{S_T0}, s{S_T0}, {WS_STAMP}")
        self.e(f"v_lshlrev_b32 v2, 2, v{V_LANE}")
        self.e(f"buffer_store_dword v{V_STAMP}, v2, {srd('ws')}, s{S_T0} offen")

def dma(g, vo, srdname, soff, ldsoff, tag, sc1=False):
    g.e(f"s_add_u32 m0, s{S_WLDS}, {ldsoff}")
    g.vmem(f"buffer_load_dwordx4 v{vo}, {srd(srdname)}, s{soff} offen{' sc1' if sc1 else ''} lds", tag)

def dma_chunk(g, vo, srdname, sbase, imm, slot_off, tag, sc1=False):
    if imm: g.e(f"s_add_u32 s{S_T4}, s{sbase}, {imm}"); so = S_T4
    else: so = sbase
    dma(g, vo, srdname, so, slot_off, tag, sc1)
    dma(g, vo + 1, srdname, so, slot_off + 4096, tag, sc1)

def pack_store_tile(g, acc, T, vst, srdname, soff, imm, neg=False, sc1=False, tag='st'):
    n = "-" if neg else ""
    for qq in range(2):
        r = acc + 8 * qq
        t = T + 4 * qq
        g.e(f"v_cvt_pk_bf16_f32 v{t+0}, {n}v{r+0}, {n}v{r+1}")
        g.e(f"v_cvt_pk_bf16_f32 v{t+1}, {n}v{r+2}, {n}v{r+3}")
        g.e(f"v_cvt_pk_bf16_f32 v{t+2}, {n}v{r+4}, {n}v{r+5}")
        g.e(f"v_cvt_pk_bf16_f32 v{t+3}, {n}v{r+6}, {n}v{r+7}")
    for qq in range(2):
        t = T + 4 * qq
        g.e(f"v_permlane32_swap_b32 v{t+0}, v{t+2}")
        g.e(f"v_permlane32_swap_b32 v{t+1}, v{t+3}")
    for qq in range(2):
        t = T + 4 * qq
        g.vmem(f"buffer_store_dwordx4 {V(t)}, v{vst}, {srd(srdname)}, s{soff} offen offset:{imm + 32*qq}{' sc1' if sc1 else ''}", tag)

def lane_consts_common(g, T):
    g.e(f"v_lshrrev_b32 v{T}, 3, v{V_LANE}")
    g.e(f"s_lshl_b32 s{S_T2}, s{S_W}, 3")
    g.e(f"v_add_u32 v{T}, s{S_T2}, v{T}")
    g.e(f"v_and_b32 v{T+1}, 7, v{V_LANE}")
    g.e(f"v_lshrrev_b32 v{T+2}, 4, v{V_LANE}")
    g.e(f"s_lshl_b32 s{S_T2}, s{S_SEL0}, 2")
    g.e(f"v_add_u32 v{T+3}, s{S_T2}, v{T+2}")
    g.e(f"v_xor_b32 v{T+3}, v{T+3}, v{T+1}")
    g.e(f"v_lshlrev_b32 v{T+3}, 4, v{T+3}")
    g.e(f"v_and_b32 v{T+2}, 1, v{T+2}")
    g.e(f"v_lshlrev_b32 v{T+2}, 2, v{T+2}")
    g.e(f"v_xor_b32 v{T+2}, v{T+2}, v{T+1}")

def rdA_base(g, dst, T):
    g.e(f"v_and_b32 v{dst}, 31, v{V_LANE}")
    g.e(f"v_lshlrev_b32 v{dst}, 7, v{dst}")
    g.e(f"v_lshrrev_b32 v{T}, 5, v{V_LANE}")
    g.e(f"v_bfe_u32 v{T+1}, v{V_LANE}, 1, 3")
    g.e(f"v_xor_b32 v{T}, v{T}, v{T+1}")
    g.e(f"v_lshl_add_u32 v{dst}, v{T}, 4, v{dst}")

def rdB_base(g, dst, T):
    g.e(f"v_lshrrev_b32 v{T}, 5, v{V_LANE}")
    g.e(f"v_lshlrev_b32 v{T}, 3, v{T}")
    g.e(f"v_bfe_u32 v{T+1}, v{V_LANE}, 2, 2")
    g.e(f"v_add_u32 v{T}, v{T}, v{T+1}")
    g.e(f"v_lshlrev_b32 v{T}, 7, v{T}")
    g.e(f"v_bfe_u32 v{T+2}, v{V_LANE}, 4, 1")
    g.e(f"v_lshlrev_b32 v{T+2}, 5, v{T+2}")
    g.e(f"v_and_b32 v{T+3}, 3, v{V_LANE}")
    g.e(f"v_lshl_add_u32 v{T+2}, v{T+3}, 3, v{T+2}")
    g.e(f"v_bfe_u32 v{T+3}, v{V_LANE}, 3, 1")
    g.e(f"v_lshlrev_b32 v{T+3}, 6, v{T+3}")
    g.e(f"v_xor_b32 v{T+2}, v{T+2}, v{T+3}")
    g.e(f"v_add_u32 v{dst}, v{T}, v{T+2}")

def rB(dstkind, dst, vaddr, off):
    return [f"ds_read_b64_tr_b16 {dstkind}[{dst}:{dst+1}], v{vaddr} offset:{off}",
            f"ds_read_b64_tr_b16 {dstkind}[{dst+2}:{dst+3}], v{vaddr} offset:{off+512}"]

def poll(g, vflag, vtmp, vnonce, soff, name):
    g.wait_vm_all() if False else None
    L = f"L_poll_{name}"
    g.e(f"s_mov_b32 s{S_T5}, 0")
    g.label(L)
    g.e(f"buffer_load_dword v{vtmp}, v{vflag}, {srd('ws')}, s{soff} offen sc1")
    g.e(f"s_add_u32 s{S_T5}, s{S_T5}, 1")
    g.e("s_waitcnt vmcnt(0)")
    g.e(f"v_cmp_eq_u32 vcc, v{vtmp}, v{vnonce}")
    g.e(f"s_cmp_gt_u32 s{S_T5}, 200000")
    g.e(f"s_cbranch_scc1 {L}_x")
    g.e("s_cmp_eq_u64 vcc, exec")
    g.e(f"s_cbranch_scc0 {L}")
    g.label(L + "_x")
    g.vm = []

def get_nonce(g, vn, vtmp):
    L = "L_nonce_" + g.role
    g.e(f"v_mov_b32 v{vtmp}, 0")
    g.e(f"s_mov_b32 s{S_T5}, 0")
    g.label(L)
    g.e(f"buffer_load_dword v{vn}, v{vtmp}, {srd('dbg')}, 0 offen sc1")
    g.e(f"s_add_u32 s{S_T5}, s{S_T5}, 1")
    g.e("s_waitcnt vmcnt(0)")
    g.e(f"v_cmp_ne_u32 vcc, 0, v{vn}")
    g.e(f"s_cmp_gt_u32 s{S_T5}, 200000")
    g.e(f"s_cbranch_scc1 {L}_x")
    g.e("s_cmp_eq_u64 vcc, exec")
    g.e(f"s_cbranch_scc0 {L}")
    g.label(L + "_x")
    g.vm = []

def publish(g, vnonce, vtmp, soff):
    g.e(f"v_mov_b32 v{vtmp}, 0")
    g.e("s_mov_b64 exec, 1")
    g.vmem(f"buffer_store_dword v{vnonce}, v{vtmp}, {srd('ws')}, s{soff} offen sc1", 'flag')
    g.e("s_mov_b64 exec, -1")

def role_A(g):
    g.role = "A"; g.stampnames = []
    V_X, V_WKV, V_WQ, V_WO, V_OD, V_B0, V_B1, V_BW = 2, 3, 5, 7, 124, 10, 11, 12
    V_RA = 13
    V_ST, V_NON, V_KS, V_KL, V_FL = 17, 18, 19, 20, 21
    V_WP = 22
    V_SEL = 30
    T = 38
    ACC0 = 48
    ACC1 = 64
    FR = 80
    X = 112
    S_RB, S_G, S_XROW, S_WCOL, S_KVW, S_KVR, S_FKW, S_FKR, S_FOW, S_FOR, S_OW = range(S_R, S_R + 11)
    S_OR, S_WOC, S_OUT = 98, 99, 100
    g.e("s_setprio 2")
    g.e(f"s_and_b32 s{S_T0}, s2, 7")
    g.e(f"s_lshr_b32 s{S_T1}, s2, 3")
    g.e(f"s_lshr_b32 s{S_T2}, s{S_T0}, 1")
    g.e(f"s_lshl_b32 s{S_T2}, s{S_T2}, 2")
    g.e(f"s_lshr_b32 s{S_T3}, s{S_T1}, 3")
    g.e(f"s_add_u32 s{S_RB}, s{S_T2}, s{S_T3}")
    g.e(f"s_and_b32 s{S_T2}, s{S_T0}, 1")
    g.e(f"s_lshl_b32 s{S_T2}, s{S_T2}, 3")
    g.e(f"s_and_b32 s{S_T3}, s{S_T1}, 7")
    g.e(f"s_add_u32 s{S_G}, s{S_T2}, s{S_T3}")
    g.e(f"s_lshl_b32 s{S_T0}, s{S_RB}, 2")
    g.e(f"s_add_u32 s{S_T0}, s{S_T0}, s{S_W}")
    g.e(f"s_lshl_b32 s{S_XROW}, s{S_T0}, 15")
    g.e(f"s_lshl_b32 s{S_WCOL}, s{S_G}, 6")
    g.e(f"v_and_b32 v{V_X}, 31, v{V_LANE}")
    g.e(f"v_lshlrev_b32 v{V_X}, 10, v{V_X}")
    g.e(f"v_lshrrev_b32 v{T}, 5, v{V_LANE}")
    g.e(f"v_lshl_add_u32 v{V_X}, v{T}, 4, v{V_X}")
    lane_consts_common(g, T)
    g.e(f"v_lshrrev_b32 v{T+4}, 2, v{T+2}")
    g.e(f"v_and_b32 v{T+5}, 3, v{T+2}")
    g.e(f"v_lshlrev_b32 v{T+5}, 4, v{T+5}")
    g.e(f"v_mul_u32_u24 v{T+6}, 3072, v{T}")
    g.e(f"v_add_u32 v{T+6}, v{T+6}, v{T+5}")
    g.e(f"v_lshl_add_u32 v{V_WKV}, v{T+4}, 10, v{T+6}")
    g.e(f"v_add_u32 v{V_WKV}, 1024, v{V_WKV}")
    g.e(f"v_add_u32 v{V_WKV+1}, {32*3072}, v{V_WKV}")
    g.e(f"v_mul_u32_u24 v{T+7}, {64*3072}, v{T+4}")
    g.e(f"v_add_u32 v{V_WQ}, v{T+6}, v{T+7}")
    g.e(f"v_add_u32 v{V_WQ+1}, {32*3072}, v{V_WQ}")
    g.e(f"v_lshlrev_b32 v{T+6}, 10, v{T}")
    g.e(f"v_lshl_add_u32 v{V_WO}, v{T+2}, 4, v{T+6}")
    g.e(f"v_add_u32 v{V_WO+1}, {32*1024}, v{V_WO}")
    g.e(f"v_add_u32 v{V_OD}, v{T+6}, v{T+3}")
    g.e(f"v_add_u32 v{V_OD+1}, {32*1024}, v{V_OD}")
    srd_setup(g, ['xA', 'wqkv', 'wphi', 'wo', 'out', 'dbg', 'ws'])
    g.e(f"s_or_b32 s{S_T0}, s2, s{S_W}")
    g.e(f"s_cmp_lg_u32 s{S_T0}, 0")
    g.e("s_cbranch_scc1 L_nononce")
    g.e("s_memrealtime s[96:97]\ns_waitcnt lgkmcnt(0)")
    g.e("s_or_b32 s96, s96, 1")
    g.e(f"v_mov_b32 v{T}, s96\nv_mov_b32 v{T+1}, 0")
    g.e("s_mov_b64 exec, 1")
    g.e(f"buffer_store_dword v{T}, v{T+1}, {srd('dbg')}, 0 offen sc1")
    g.e("s_mov_b64 exec, -1")
    g.e("s_nop 1")
    g.label("L_nononce")
    g.vm = ['x'] if False else []
    S_XB = S_OUT + 1
    g.e(f"s_lshl_b32 s{S_XB}, s{S_RB}, 17")
    def kv_step_chunks(t):
        sl = 3 * (t % 3)
        dma_chunk(g, V_WKV, 'wqkv', S_WCOL, t * 64 * 3072, sl * SLOT, ('kv', t))
        dma_chunk(g, V_OD, 'xA', S_XB, t * 128, (sl + 1) * SLOT, ('kv', t))
        dma_chunk(g, V_OD, 'xA', S_XB, t * 128 + 65536, (sl + 2) * SLOT, ('kv', t))
    for t in range(3): kv_step_chunks(t)
    g.stamp("issued")
    rdB_base(g, V_B0, T)
    g.e(f"v_xor_b32 v{V_B1}, 64, v{V_B0}")
    g.e(f"s_lshl_b32 s{S_T2}, s{S_SEL0}, 6")
    g.e(f"v_xor_b32 v{V_BW}, s{S_T2}, v{V_B0}")
    g.e(f"s_lshl_b32 s{S_T2}, s{S_SEL1}, 13")
    g.e(f"v_add_u32 v{V_BW}, s{S_T2}, v{V_BW}")
    rdA_base(g, V_RA, T)
    for kk in range(1, 4): g.e(f"v_xor_b32 v{V_RA+kk}, {32*kk}, v{V_RA}")
    g.e(f"s_lshl_b32 s{S_T2}, s{S_W}, 12")
    for kk in range(4): g.e(f"v_add_u32 v{V_RA+kk}, s{S_T2}, v{V_RA+kk}")
    g.e(f"v_and_b32 v{T}, 31, v{V_LANE}")
    g.e(f"v_lshlrev_b32 v{V_ST}, 11, v{T}")
    g.e(f"v_lshrrev_b32 v{T+1}, 5, v{V_LANE}")
    g.e(f"v_lshl_add_u32 v{V_ST}, v{T+1}, 4, v{V_ST}")
    g.e(f"v_and_b32 v{T+2}, 15, v{V_LANE}")
    g.e(f"v_lshlrev_b32 v{T+2}, 1, v{T+2}")
    g.e(f"v_lshl_add_u32 v{T+2}, v{T+1}, 7, v{T+2}")
    g.e(f"v_bfe_u32 v{T+3}, v{V_LANE}, 4, 1")
    g.e(f"v_lshl_add_u32 v{T+2}, v{T+3}, 9, v{T+2}")
    g.e(f"s_lshl_b32 s{S_T2}, s{S_G}, 10")
    for i in range(8):
        off = (8 * (i >> 2) + (i & 3)) * 32
        g.vmem(f"buffer_load_ushort v{X + i}, v{T+2}, {srd('wphi')}, s{S_T2} offen offset:{off}", 'wphi')
    g.e(f"v_lshlrev_b32 v{T+4}, 2, v{T+1}")
    g.e(f"v_sub_u32 v{T+4}, v{T}, v{T+4}")
    g.e(f"s_mov_b32 s{S_T0}, 0x3f80")
    g.e(f"s_mov_b32 s{S_T1}, 0x3f800000")
    g.e(f"v_mov_b32 v{T+5}, s{S_T0}")
    g.e(f"v_mov_b32 v{T+6}, s{S_T1}")
    for sgn in range(2):
        for j in range(4):
            c = [0, 2, 8, 10][j] + 16 * sgn
            d = V_SEL + 4 * sgn + j
            g.e(f"v_cmp_eq_u32 vcc, {c}, v{T+4}")
            g.e(f"v_cndmask_b32 v{d}, 0, v{T+5}, vcc")
            g.e(f"v_cmp_eq_u32 vcc, {c+1}, v{T+4}")
            g.e(f"v_cndmask_b32 v{d}, v{d}, v{T+6}, vcc")
    g.e(f"v_min_u32 v{T+4}, 16, v{T}")
    g.e(f"v_subrev_u32 v{T+5}, 16, v{T}")
    g.e(f"v_cmp_le_u32 vcc, 16, v{T}")
    g.e(f"v_cndmask_b32 v{T+5}, 16, v{T+5}, vcc")
    g.e(f"s_cmp_eq_u32 s{S_SEL1}, 0")
    g.e("s_cselect_b64 vcc, -1, 0")
    g.e(f"v_cndmask_b32 v{T+6}, v{T+5}, v{T+4}, vcc")
    g.e(f"v_lshlrev_b32 v{V_KL}, 6, v{T+6}")
    g.e(f"v_lshl_add_u32 v{V_KL}, v{T+1}, 5, v{V_KL}")
    g.e(f"v_cmp_ge_u32 vcc, 16, v{T}")
    g.e(f"v_cndmask_b32 v{T+4}, 0, 1, vcc")
    g.e(f"v_cmp_le_u32 vcc, 16, v{T}")
    g.e(f"v_cndmask_b32 v{T+5}, 0, 1, vcc")
    g.e(f"v_cmp_eq_u32 vcc, 0, v{T}")
    g.e(f"v_cndmask_b32 v{T+5}, v{T+5}, 1, vcc")
    g.e(f"s_cmp_eq_u32 s{S_SEL1}, 0")
    g.e("s_cselect_b64 vcc, -1, 0")
    g.e(f"v_cndmask_b32 v{T+4}, v{T+5}, v{T+4}, vcc")
    g.e(f"v_cmp_eq_u32 vcc, 1, v{T+4}")
    g.e(f"v_bfrev_b32 v{T+5}, 1")
    g.e(f"v_cndmask_b32 v{V_KS}, v{T+5}, v{V_KL}, vcc")
    g.e(f"v_and_b32 v{V_FL}, 15, v{V_LANE}")
    g.e(f"v_lshlrev_b32 v{V_FL}, 2, v{V_FL}")
    g.e(f"s_mul_i32 s{S_T0}, s{S_SEL1}, 1088")
    g.e(f"s_lshl_b32 s{S_T1}, s{S_SEL0}, 4")
    g.e(f"s_add_u32 s{S_T0}, s{S_T0}, s{S_T1}")
    g.e(f"s_mul_i32 s{S_T1}, s{S_G}, {16*2176}")
    g.e(f"s_add_u32 s{S_KVR}, s{S_T0}, s{S_T1}")
    g.e(f"s_add_u32 s{S_KVR}, s{S_KVR}, {WS_KVP}")
    g.e(f"s_mul_i32 s{S_T1}, s{S_RB}, 2176")
    g.e(f"s_add_u32 s{S_KVW}, s{S_KVR}, s{S_T1}")
    g.e(f"s_lshl_b32 s{S_T0}, s{S_G}, 2")
    g.e(f"s_add_u32 s{S_T0}, s{S_T0}, s{S_W}")
    g.e(f"s_lshl_b32 s{S_T0}, s{S_T0}, 6")
    g.e(f"s_add_u32 s{S_FKR}, s{S_T0}, {WS_FKV}")
    g.e(f"s_lshl_b32 s{S_T1}, s{S_RB}, 2")
    g.e(f"s_add_u32 s{S_FKW}, s{S_FKR}, s{S_T1}")
    g.e(f"s_lshl_b32 s{S_T0}, s{S_RB}, 2")
    g.e(f"s_add_u32 s{S_T0}, s{S_T0}, s{S_W}")
    g.e(f"s_lshl_b32 s{S_T0}, s{S_T0}, 6")
    g.e(f"s_lshl_b32 s{S_T1}, s{S_G}, 2")
    g.e(f"s_add_u32 s{S_FOW}, s{S_T0}, s{S_T1}")
    g.e(f"s_add_u32 s{S_FOW}, s{S_FOW}, {WS_FO}")
    g.e(f"s_lshr_b32 s{S_T2}, s{S_G}, 2")
    g.e(f"s_lshl_b32 s{S_T0}, s{S_RB}, 2")
    g.e(f"s_add_u32 s{S_T0}, s{S_T0}, s{S_T2}")
    g.e(f"s_lshl_b32 s{S_FOR}, s{S_T0}, 6")
    g.e(f"s_add_u32 s{S_FOR}, s{S_FOR}, {WS_FO}")
    g.e(f"s_lshl_b32 s{S_OR}, s{S_T0}, 15")
    g.e(f"s_add_u32 s{S_OR}, s{S_OR}, {WS_O}")
    g.e(f"s_lshl_b32 s{S_OUT}, s{S_T0}, 16")
    g.e(f"s_and_b32 s{S_T1}, s{S_G}, 3")
    g.e(f"s_lshl_b32 s{S_WOC}, s{S_T1}, 8")
    g.e(f"s_add_u32 s{S_OUT}, s{S_OUT}, s{S_WOC}")
    g.e(f"s_lshl_b32 s{S_T1}, s{S_W}, 6")
    g.e(f"s_add_u32 s{S_OUT}, s{S_OUT}, s{S_T1}")
    g.e(f"s_add_u32 s{S_OW}, s{S_XROW}, s{S_WCOL}")
    g.e(f"s_add_u32 s{S_OW}, s{S_OW}, {WS_O}")
    g.wait_vm('wphi')
    for j in range(4): g.e(f"v_lshl_or_b32 v{X+j}, v{X+2*j+1}, 16, v{X+2*j}")
    g.e(f"v_cmp_gt_u32 vcc, 16, v{T}")
    for j in range(4):
        g.e(f"v_cndmask_b32 v{V_WP+j}, 0, v{X+j}, vcc")
        g.e(f"v_cndmask_b32 v{V_WP+4+j}, v{X+j}, 0, vcc")
    g.stamp("consts")

    QSLOT = [6, 7, 0, 1]
    def q_chunk(u): dma_chunk(g, V_WQ, 'wqkv', S_WCOL, u * 128 * 3072, QSLOT[u] * SLOT, ('q', u))
    def wo_chunk(c, slot):
        kb, half = c >> 1, c & 1
        dma_chunk(g, V_WO, 'wo', S_WOC, kb * 64 * 1024 + half * 128, slot * SLOT, ('wo', c))

    for t in range(8):
        g.wait_vm(('kv', t))
        g.e("s_barrier")
        if 1 <= t <= 5: kv_step_chunks(t + 2)
        if t == 6: q_chunk(0); q_chunk(1)
        if t == 7: q_chunk(2); q_chunk(3)
        sl = 3 * (t % 3)
        for kk in range(4):
            g.e(f"ds_read_b128 {A(4*(4*t+kk))}, v{V_RA+kk} offset:{(sl+1)*SLOT}")
            for s_ in rB('v', FR + 8 * kk, V_B0, sl * SLOT + kk * 2048): g.e(s_)
            for s_ in rB('v', FR + 8 * kk + 4, V_B1, sl * SLOT + kk * 2048): g.e(s_)
        for kk in range(4):
            g.e(f"s_waitcnt lgkmcnt({15 - 5*kk})")
            first = (t == 0 and kk == 0)
            xf = A(4 * (4 * t + kk))
            g.e(mfma(ACC0, V(FR + 8 * kk), xf, first))
            g.e(mfma(ACC1, xf, V(FR + 8 * kk + 4), first))
        g.stamp(f"kv{t}")
    g.e(f"s_lshl_b32 s{S_T2}, s{S_W}, 12")
    for kk in range(4): g.e(f"v_subrev_u32 v{V_RA+kk}, s{S_T2}, v{V_RA+kk}")

    def feature_map2(acc, PK, PH):
        kb, mx, E = X, T, acc
        for j in range(8): g.e(f"v_cvt_pk_bf16_f32 v{kb+j}, v{acc+2*j}, v{acc+2*j+1}")
        g.e(mfma(PK, V(V_WP), V(kb), True))
        g.e(mfma(PK, V(V_WP + 4), V(kb + 4), False))
        L2E = S_T3
        g.e(f"s_mov_b32 s{L2E}, 0x3fb8aa3b")
        for hs in range(2):
            p = PK + 8 * hs
            a, b = mx + 4 * hs, mx + 4 * hs + 1
            g.e(f"v_max3_f32 v{a}, v{p}, v{p+1}, v{p+2}")
            g.e(f"v_min3_f32 v{b}, v{p}, v{p+1}, v{p+2}")
            g.e(f"v_max3_f32 v{a}, v{a}, v{p+3}, v{p+4}")
            g.e(f"v_min3_f32 v{b}, v{b}, v{p+3}, v{p+4}")
            g.e(f"v_max3_f32 v{a}, v{a}, v{p+5}, v{p+6}")
            g.e(f"v_min3_f32 v{b}, v{b}, v{p+5}, v{p+6}")
            g.e(f"v_max_f32 v{a}, v{a}, v{p+7}")
            g.e(f"v_min_f32 v{b}, v{b}, v{p+7}")
        for hs in range(2):
            a, b = mx + 4 * hs, mx + 4 * hs + 1
            g.e(f"v_mov_b32 v{a+2}, v{a}")
            g.e(f"v_mov_b32 v{b+2}, v{b}")
        for hs in range(2):
            a, b = mx + 4 * hs, mx + 4 * hs + 1
            g.e(f"v_permlane32_swap_b32 v{a}, v{a+2}")
            g.e(f"v_permlane32_swap_b32 v{b}, v{b+2}")
        for hs in range(2):
            a, b = mx + 4 * hs, mx + 4 * hs + 1
            g.e(f"v_max_f32 v{a}, v{a}, v{a+2}")
            g.e(f"v_min_f32 v{b}, v{b}, v{b+2}")
            g.e(f"v_mul_f32 v{a}, s{L2E}, v{a}")
            g.e(f"v_mul_f32 v{b}, s{L2E}, v{b}")
        for hs in range(2):
            p = PK + 8 * hs
            Eh = E + 8 * hs
            a, b = mx + 4 * hs, mx + 4 * hs + 1
            for i in range(8):
                g.e(f"v_fma_f32 v{Eh+i}, -v{p+i}, s{L2E}, v{b}")
                g.e(f"v_fma_f32 v{p+i}, v{p+i}, s{L2E}, -v{a}")
        for hs in range(2):
            p = PK + 8 * hs
            Eh = E + 8 * hs
            for i in range(8):
                g.e(f"v_exp_f32 v{Eh+i}, v{Eh+i}")
                g.e(f"v_exp_f32 v{p+i}, v{p+i}")
        for hs in range(2):
            p = PK + 8 * hs
            Eh = E + 8 * hs
            sp_, sm = mx + 4 * hs, mx + 4 * hs + 1
            g.e(f"v_add_f32 v{sp_}, v{p}, v{p+1}")
            g.e(f"v_add_f32 v{sm}, v{Eh}, v{Eh+1}")
            for i in range(2, 8):
                g.e(f"v_add_f32 v{sp_}, v{sp_}, v{p+i}")
                g.e(f"v_add_f32 v{sm}, v{sm}, v{Eh+i}")
            g.e(f"v_mov_b32 v{sp_+2}, v{sp_}")
            g.e(f"v_mov_b32 v{sm+2}, v{sm}")
        for hs in range(2):
            sp_, sm = mx + 4 * hs, mx + 4 * hs + 1
            g.e(f"v_permlane32_swap_b32 v{sp_}, v{sp_+2}")
            g.e(f"v_permlane32_swap_b32 v{sm}, v{sm+2}")
        for hs in range(2):
            sp_, sm = mx + 4 * hs, mx + 4 * hs + 1
            g.e(f"v_add_f32 v{sp_}, v{sp_}, v{sp_+2}")
            g.e(f"v_add_f32 v{sm}, v{sm}, v{sm+2}")
            g.e(f"v_rcp_f32 v{sp_}, v{sp_}")
            g.e(f"v_rcp_f32 v{sm}, v{sm}")
        for hs in range(2):
            p = PK + 8 * hs
            Eh = E + 8 * hs
            sp_, sm = mx + 4 * hs, mx + 4 * hs + 1
            for i in range(8):
                g.e(f"v_mul_f32 v{p+i}, v{p+i}, v{sp_}")
                g.e(f"v_mul_f32 v{Eh+i}, v{Eh+i}, v{sm}")
            for j in range(4):
                g.e(f"v_cvt_pk_bf16_f32 v{PH+8*hs+j}, v{p+2*j}, v{p+2*j+1}")
                g.e(f"v_cvt_pk_bf16_f32 v{PH+8*hs+4+j}, v{Eh+2*j}, v{Eh+2*j+1}")

    PK, PH = FR, FR + 16
    feature_map2(ACC0, PK, PH)
    g.stamp("fmK")
    XT = [ACC0, PK]
    for hs in range(2):
        g.e(mfma(XT[hs], V(PH + 8 * hs), V(V_SEL), True))
        g.e(mfma(XT[hs], V(PH + 8 * hs + 4), V(V_SEL + 4), False))
    for j in range(8): g.e(f"v_cvt_pk_bf16_f32 v{X+j}, v{ACC1+2*j}, v{ACC1+2*j+1}")
    g.e(f"s_mov_b32 s{S_T0}, 0x3f803f80")
    g.e(f"v_mov_b32 v{T}, s{S_T0}")
    g.e(f"v_and_b32 v{T+1}, 16, v{V_LANE}")
    g.e(f"v_cmp_eq_u32 vcc, 0, v{T+1}")
    for j in range(8):
        g.e(f"v_cndmask_b32 v{ACC1+j}, v{T}, v{X+j}, vcc")
        g.e(f"v_cndmask_b32 v{ACC1+8+j}, v{X+j}, v{T}, vcc")
    for hs in range(2):
        for j in range(8):
            g.e(f"v_cvt_pk_bf16_f32 v{PH+8*hs+j}, v{XT[hs]+2*j}, v{XT[hs]+2*j+1}")
    KVT = [ACC0, PK]
    for hs in range(2):
        g.e(mfma(KVT[hs], V(PH + 8 * hs), V(ACC1 + 8 * hs), True))
        g.e(mfma(KVT[hs], V(PH + 8 * hs + 4), V(ACC1 + 8 * hs + 4), False))
    RED = 2 * SLOT
    g.e(f"v_lshlrev_b32 v{T}, 4, v{V_LANE}")
    g.e(f"s_lshl_b32 s{S_T0}, s{S_W}, 13")
    g.e(f"v_add_u32 v{T+1}, s{S_T0}, v{T}")
    g.e(f"s_lshl_b32 s{S_T0}, s{S_W}, 11")
    g.e(f"v_add_u32 v{T+2}, s{S_T0}, v{T}")
    g.e("s_barrier")
    for hs in range(2):
        for q in range(4):
            g.e(f"ds_write_b128 v{T+1}, {V(KVT[hs]+4*q)} offset:{RED + (hs*4+q)*1024}")
    g.e("s_waitcnt lgkmcnt(0)")
    g.e("s_barrier")
    for sw in range(4):
        for q in range(2):
            g.e(f"ds_read_b128 {V(PH + 8*sw + 4*q)}, v{T+2} offset:{RED + sw*8192 + q*1024}") if sw < 2 else \
            g.e(f"ds_read_b128 {V(ACC1 + 8*(sw-2) + 4*q)}, v{T+2} offset:{RED + sw*8192 + q*1024}")
    get_nonce_early = True
    g.e("s_waitcnt lgkmcnt(0)")
    for i in range(8):
        g.e(f"v_add_f32 v{PH+i}, v{PH+i}, v{PH+8+i}")
        g.e(f"v_add_f32 v{ACC1+i}, v{ACC1+i}, v{ACC1+8+i}")
    for i in range(8): g.e(f"v_add_f32 v{PH+i}, v{PH+i}, v{ACC1+i}")
    for j in range(4): g.e(f"v_cvt_pk_bf16_f32 v{X+j}, v{PH+2*j}, v{PH+2*j+1}")
    g.vmem(f"buffer_store_dwordx4 {V(X)}, v{V_KS}, {srd('ws')}, s{S_KVW} offen sc1", 'kvst')
    g.stamp("kvst")
    get_nonce(g, V_NON, T)
    publish(g, V_NON, T, S_FKW)
    g.stamp("pubKV")
    g.e("s_barrier")
    for c in range(4): wo_chunk(c, 2 + c)
    for u in range(4):
        g.wait_vm(('q', u))
        g.e("s_barrier")
        if u == 2: wo_chunk(4, 6); wo_chunk(5, 7)
        for cn in range(2):
            for kk in range(4):
                for s_ in rB('v', FR + 16 * cn + 4 * kk, V_B1 if cn else V_B0, QSLOT[u] * SLOT + kk * 2048): g.e(s_)
        for cn in range(2):
            for kk in range(4):
                n = 4 * cn + kk
                g.e(f"s_waitcnt lgkmcnt({14 - 2*n})")
                g.e(mfma(ACC0, V(FR + 16 * cn + 4 * kk), A(4 * (8 * u + 4 * cn + kk)), u == 0 and n == 0))
    g.e("s_barrier")
    wo_chunk(6, 0); wo_chunk(7, 1)
    g.stamp("qgemm")
    PHQ = ACC1
    feature_map2(ACC0, FR, PHQ)
    g.stamp("fmQ")
    def wo_read(kb, slot_even):
        for kk in range(4):
            for s in rB('a', 16 * kb + 4 * kk, V_BW, slot_even * SLOT + kk * 2048): g.e(s)
    for kb in range(4):
        g.wait_vm([('wo', 2 * kb), ('wo', 2 * kb + 1)])
        g.e("s_barrier")
        wo_read(kb, (2 + 2 * kb) % 8)
    g.e("s_waitcnt lgkmcnt(0)")
    g.e("s_barrier")
    g.stamp("wo0")
    poll(g, V_FL, T, V_NON, S_FKR, "kv")
    g.stamp("pollKV")
    PB = 80
    dsts = [48 + 4 * i for i in range(4)] + [80 + 4 * i for i in range(8)] + [112, 116, 120] + [T]
    for r in range(16):
        g.e(f"s_add_u32 s{S_T4}, s{S_KVR}, {r*2176}")
        g.vmem(f"buffer_load_dwordx4 {V(dsts[r])}, v{V_KL}, {srd('ws')}, s{S_T4} offen sc1", ('p', r))
    for c in range(8, 16): wo_chunk(c, (c - 8 + 2) % 8)
    SUM = T + 4
    SUM = V_SEL
    g.e(f"s_mov_b32 s{S_T0}, 0x3f80")
    g.e(f"s_mov_b32 s{S_T1}, 0x3f800000")
    for i in range(8): g.e(f"v_mov_b32 v{SUM+i}, 0")
    for r in range(16):
        g.wait_vm(('p', r))
        for j in range(4):
            g.e(f"v_dot2_f32_bf16 v{SUM+2*j}, v{dsts[r]+j}, s{S_T0}, v{SUM+2*j}")
            g.e(f"v_dot2_f32_bf16 v{SUM+2*j+1}, v{dsts[r]+j}, s{S_T1}, v{SUM+2*j+1}")
    for j in range(4): g.e(f"v_cvt_pk_bf16_f32 v{T+j}, v{SUM+2*j}, v{SUM+2*j+1}")
    SCR = 9 * SLOT
    g.e(f"v_lshlrev_b32 v{T+4}, 4, v{V_LANE}")
    g.e(f"v_add_u32 v{T+4}, {SCR}, v{T+4}")
    g.e(f"v_add_u32 v{T+5}, s{S_WLDS}, v{T+4}")
    g.e(f"ds_write_b128 v{T+5}, {V(T)}")
    g.e("s_waitcnt lgkmcnt(0)")
    g.e("s_barrier")
    for u in range(4): g.e(f"ds_read_b128 {V(FR+4*u)}, v{T+4} offset:{u*1024}")
    g.e("s_waitcnt lgkmcnt(0)")
    g.stamp("kvsum")
    TT = [ACC0, FR + 16]
    for hs in range(2):
        g.e(mfma(TT[hs], V(FR + 8 * hs), V(PHQ + 8 * hs), True))
        g.e(mfma(TT[hs], V(FR + 8 * hs + 4), V(PHQ + 8 * hs + 4), False))
    g.e(f"s_mov_b32 s{S_T0}, 0x358637bd")
    g.e(f"v_add_f32 v{T}, s{S_T0}, v{TT[0]+8}")
    g.e(f"v_add_f32 v{T+1}, s{S_T0}, v{TT[1]}")
    g.e(f"v_rcp_f32 v{T}, v{T}")
    g.e(f"v_rcp_f32 v{T+1}, v{T+1}")
    for i in range(8):
        g.e(f"v_mul_f32 v{TT[0]+i}, v{TT[0]+i}, v{T}")
        g.e(f"v_mul_f32 v{TT[0]+8+i}, v{TT[1]+8+i}, v{T+1}")
    pack_store_tile(g, TT[0], X, V_X, 'ws', S_OW, 0, sc1=True, tag='ost')
    g.wait_vm('ost')
    publish(g, V_NON, T, S_FOW)
    g.stamp("pubO")
    for kb in range(4, 8):
        g.wait_vm([('wo', 2 * kb), ('wo', 2 * kb + 1)])
        g.e("s_barrier")
        wo_read(kb, (2 * kb - 8 + 2) % 8)
    g.e("s_waitcnt lgkmcnt(0)")
    g.e("s_barrier")
    g.stamp("wo1")
    poll(g, V_FL, T, V_NON, S_FOR, "o")
    g.stamp("pollO")
    for c in range(8):
        g.e(f"s_add_u32 s{S_T4}, s{S_OR}, {c*128}")
        dma(g, V_OD, 'ws', S_T4, c * 4096, ('o', c), sc1=True)
    for c in range(8):
        g.wait_vm(('o', c))
        g.e("s_barrier")
        st = FR + 16 * (c & 1)
        for kk in range(4): g.e(f"ds_read_b128 {V(st + 4*kk)}, v{V_RA+kk} offset:{c*4096}")
        for kk in range(4):
            g.e(f"s_waitcnt lgkmcnt({3-kk})")
            g.e(mfma(ACC0, A(16 * c + 4 * kk), V(st + 4 * kk), c == 0 and kk == 0))
    pack_store_tile(g, ACC0, X, V_ST, 'out', S_OUT, 0)
    g.stamp("done")
    g.stamp_flush("A")

def srd_setup(g, names):
    g.e("s_waitcnt lgkmcnt(0)")
    for n in names:
        i = KARG.index(n)
        b = SRD[n]
        g.e(f"s_mov_b32 s{b}, s{S_KARG+2*i}")
        g.e(f"s_mov_b32 s{b+1}, s{S_KARG+2*i+1}")
        g.e(f"s_mov_b32 s{b+2}, {SIZES[n]}")
        g.e(f"s_mov_b32 s{b+3}, 0x00020000")

def role_B(g):
    g.role = "B"; g.stampnames = []; g.nstamp = 1
    RING = 9
    V_XB, V_H, V_GB, V_C = 2, 4, 6, 8
    V_A1, V_A0 = 10, 18
    V_B0 = 26
    V_GS, V_NON, V_FL, V_YS = 27, 28, 29, 30
    V_W32 = 32
    V_TW = 31
    T = 48
    ACCA, ACCB = 64, 80
    FR = 96
    S_SP, S_EB, S_XR, S_HR, S_GW, S_FW, S_FR_, S_GR, S_YO, S_S2 = range(S_R, S_R + 10)
    g.e(f"s_sub_u32 s{S_T5}, s2, 256")
    g.e(f"s_and_b32 s{S_T0}, s{S_T5}, 7")
    g.e(f"s_lshr_b32 s{S_T1}, s{S_T5}, 3")
    g.e(f"s_lshr_b32 s{S_T2}, s{S_T0}, 1")
    g.e(f"s_lshl_b32 s{S_T2}, s{S_T2}, 3")
    g.e(f"s_lshr_b32 s{S_T3}, s{S_T1}, 2")
    g.e(f"s_add_u32 s{S_SP}, s{S_T2}, s{S_T3}")
    g.e(f"s_and_b32 s{S_T2}, s{S_T0}, 1")
    g.e(f"s_lshl_b32 s{S_T2}, s{S_T2}, 2")
    g.e(f"s_and_b32 s{S_T3}, s{S_T1}, 3")
    g.e(f"s_add_u32 s{S_EB}, s{S_T2}, s{S_T3}")
    g.e(f"s_lshl_b32 s{S_XR}, s{S_SP}, 11")
    g.e(f"s_lshl_b32 s{S_HR}, s{S_EB}, 16")
    g.e(f"s_lshl_b32 s{S_S2}, s{S_SP}, 1")
    g.e(f"s_add_u32 s{S_S2}, s{S_S2}, s{S_SEL1}")
    g.e(f"s_lshl_b32 s{S_T2}, s{S_T1}, 3")
    g.e(f"s_add_u32 s{S_T2}, s{S_T2}, s{S_T0}")
    g.e(f"s_lshl_b32 s{S_GR}, s{S_T2}, 14")
    g.e(f"s_add_u32 s{S_GR}, s{S_GR}, {WS_G}")
    g.e(f"s_lshl_b32 s{S_FR_}, s{S_T0}, 7")
    g.e(f"s_add_u32 s{S_FR_}, s{S_FR_}, {WS_FB}")
    g.e(f"s_lshl_b32 s{S_T2}, s{S_SEL1}, 10")
    g.e(f"s_add_u32 s{S_T2}, s{S_T2}, s{S_T1}")
    g.e(f"s_lshl_b32 s{S_YO}, s{S_T2}, 11")
    g.e(f"s_lshl_b32 s{S_T2}, s{S_T0}, 7")
    g.e(f"s_add_u32 s{S_YO}, s{S_YO}, s{S_T2}")
    g.e(f"s_lshl_b32 s{S_T2}, s{S_SEL0}, 6")
    g.e(f"s_add_u32 s{S_YO}, s{S_YO}, s{S_T2}")
    g.e(f"s_add_u32 s{S_YO}, s{S_YO}, 1024")
    g.e(f"s_lshl_b32 s{S_GW}, s{S_EB}, 14")
    g.e(f"s_lshl_b32 s{S_T2}, s{S_S2}, 7")
    g.e(f"s_add_u32 s{S_GW}, s{S_GW}, s{S_T2}")
    g.e(f"s_lshl_b32 s{S_T2}, s{S_SEL0}, 6")
    g.e(f"s_add_u32 s{S_GW}, s{S_GW}, s{S_T2}")
    g.e(f"s_add_u32 s{S_GW}, s{S_GW}, {WS_G}")
    g.e(f"s_lshl_b32 s{S_FW}, s{S_EB}, 7")
    g.e(f"s_lshl_b32 s{S_T2}, s{S_SP}, 2")
    g.e(f"s_add_u32 s{S_FW}, s{S_FW}, s{S_T2}")
    g.e(f"s_add_u32 s{S_FW}, s{S_FW}, {WS_FB}")
    lane_consts_common(g, T)
    g.e(f"v_lshl_add_u32 v{V_XB}, v{T}, 16, v{T+3}")
    g.e(f"v_add_u32 v{V_XB+1}, 1024, v{V_XB}")
    g.e(f"v_lshl_add_u32 v{V_H}, v{T}, 10, v{T+3}")
    g.e(f"v_add_u32 v{V_H+1}, {32*1024}, v{V_H}")
    g.e(f"v_lshlrev_b32 v{T+4}, 4, v{T+2}")
    g.e(f"v_lshl_add_u32 v{V_GB}, v{T}, 7, v{T+4}")
    g.e(f"v_add_u32 v{V_GB+1}, {32*128}, v{V_GB}")
    g.e(f"v_lshl_add_u32 v{V_C}, v{T}, 17, v{T+3}")
    g.e(f"v_add_u32 v{V_C+1}, {32*131072}, v{V_C}")
    srd_setup(g, ['xB', 'Cr', 'Ci', 'Hr', 'Hi', 'out', 'dbg', 'ws'])
    seq = []
    for t in range(8):
        seq += [(V_XB, 'xB', S_XR, t * 128, ('x', t)), (V_H, 'Hr', S_HR, t * 128, ('hr', t)), (V_H, 'Hi', S_HR, t * 128, ('hi', t))]
    g.e(f"s_mov_b32 s{S_T5}, 0")
    seq += [(V_C, 'Cr', S_T5, 0, ('c', 0)), (V_C, 'Ci', S_T5, 0, ('c', 1))]
    ptr = [0]
    def issue_upto(lim):
        while ptr[0] < min(lim, len(seq)):
            vo, sn, sb, imm, tag = seq[ptr[0]]
            dma_chunk(g, vo, sn, sb, imm, (ptr[0] % RING) * SLOT, tag)
            ptr[0] += 1
    DEPTH0 = optv('bdepth', 9)
    issue_upto(DEPTH0)
    g.stamp("issued")
    rdA_base(g, T, T + 1)
    g.e(f"s_lshl_b32 s{S_T2}, s{S_SEL1}, 12")
    g.e(f"s_lshl_b32 s{S_T3}, s{S_SEL0}, 12")
    for kk in range(4):
        g.e(f"v_xor_b32 v{T+1}, {kk*32}, v{T}")
        g.e(f"v_add_u32 v{V_A1+kk}, s{S_T2}, v{T+1}")
        g.e(f"v_add_u32 v{V_A1+4+kk}, 0x10000, v{V_A1+kk}")
        g.e(f"v_add_u32 v{V_A0+kk}, s{S_T3}, v{T+1}")
        g.e(f"v_add_u32 v{V_A0+4+kk}, 0x10000, v{V_A0+kk}")
    rdB_base(g, V_B0, T)
    g.e(f"s_lshl_b32 s{S_T2}, s{S_SEL0}, 6")
    g.e(f"v_xor_b32 v{V_B0}, s{S_T2}, v{V_B0}")
    g.e(f"v_and_b32 v{T}, 31, v{V_LANE}")
    g.e(f"v_lshrrev_b32 v{T+1}, 5, v{V_LANE}")
    g.e(f"v_lshlrev_b32 v{T+2}, 18, v{T}")
    g.e(f"v_lshl_add_u32 v{T+2}, v{T+1}, 3, v{T+2}")
    for mi, mn in enumerate(('Cr', 'Ci')):
        for ks in range(2):
            for q in range(2):
                d = V_W32 + 8 * mi + 4 * ks + 2 * q
                g.vmem(f"buffer_load_dwordx2 {V(d,2)}, v{T+2}, {srd(mn)}, 0 offen offset:{32*ks+16*q}", 'w32')
    g.e(f"v_lshlrev_b32 v{T+3}, 12, v{T}")
    g.e(f"s_lshl_b32 s{S_T2}, s{S_S2}, 1")
    g.vmem(f"buffer_load_ushort v{V_TW}, v{T+3}, {srd('Cr')}, s{S_T2} offen", 'w32')
    g.vmem(f"buffer_load_ushort v{V_FL}, v{T+3}, {srd('Ci')}, s{S_T2} offen", 'w32')
    g.e(f"v_lshlrev_b32 v{V_GS}, 17, v{T}")
    g.e(f"v_lshl_add_u32 v{V_GS}, v{T+1}, 4, v{V_GS}")
    g.e(f"v_lshlrev_b32 v{V_YS}, 16, v{T}")
    g.e(f"v_lshl_add_u32 v{V_YS}, v{T+1}, 4, v{V_YS}")
    def rA(dst, which, ci, kk):
        off = (ci % RING) * SLOT
        base = V_A1 if which else V_A0
        if off >= 65536: return f"ds_read_b128 {dst}, v{base+4+kk} offset:{off-65536}"
        return f"ds_read_b128 {dst}, v{base+kk} offset:{off}"
    for t in range(8):
        g.wait_vm([('x', t), ('hr', t), ('hi', t)])
        g.e("s_barrier")
        issue_upto(3 * t + RING)
        for kk in range(4):
            g.e(rA(A(12 * kk), 1, 3 * t, kk))
            g.e(rA(A(12 * kk + 4), 0, 3 * t + 1, kk))
            g.e(rA(A(12 * kk + 8), 0, 3 * t + 2, kk))
        for kk in range(4):
            g.e(f"s_waitcnt lgkmcnt({9 - 3*kk})")
            first = (t == 0 and kk == 0)
            g.e(mfma(ACCA, A(12 * kk), A(12 * kk + 4), first))
            g.e(mfma(ACCB, A(12 * kk), A(12 * kk + 8), first))
        g.stamp(f"g{t}")
    g.wait_vm('w32')
    V_TI = T + 15
    g.e(f"v_lshlrev_b32 v{V_TW}, 16, v{V_TW}")
    g.e(f"v_lshlrev_b32 v{V_TI}, 16, v{V_FL}")
    AB, BB, NB = 96, 104, 112
    for j in range(8):
        g.e(f"v_cvt_pk_bf16_f32 v{AB+j}, v{ACCA+2*j}, v{ACCA+2*j+1}")
        g.e(f"v_cvt_pk_bf16_f32 v{BB+j}, v{ACCB+2*j}, v{ACCB+2*j+1}")
        g.e(f"v_cvt_pk_bf16_f32 v{NB+j}, -v{ACCB+2*j}, -v{ACCB+2*j+1}")
    GR, GI = ACCA, ACCB
    CR, CI = V_W32, V_W32 + 8
    for ks in range(2):
        g.e(mfma(GR, V(AB + 4 * ks), V(CR + 4 * ks), ks == 0))
        g.e(mfma(GI, V(AB + 4 * ks), V(CI + 4 * ks), ks == 0))
    for ks in range(2):
        g.e(mfma(GR, V(NB + 4 * ks), V(CI + 4 * ks), False))
        g.e(mfma(GI, V(BB + 4 * ks), V(CR + 4 * ks), False))
    R2 = 96
    for i in range(16):
        g.e(f"v_mul_f32 v{R2+i}, v{GI+i}, v{V_TI}")
        g.e(f"v_mul_f32 v{GI+i}, v{GI+i}, v{V_TW}")
        g.e(f"v_fma_f32 v{R2+i}, v{GR+i}, v{V_TW}, -v{R2+i}")
        g.e(f"v_fma_f32 v{GI+i}, v{GR+i}, v{V_TI}, v{GI+i}")
    pack_store_tile(g, R2, T, V_GS, 'ws', S_GW, 0, sc1=True, tag='gst')
    g.e(f"s_add_u32 s{S_T4}, s{S_GW}, 8192")
    pack_store_tile(g, GI, 112, V_GS, 'ws', S_T4, 0, neg=True, sc1=True, tag='gst')
    g.stamp("gst")
    get_nonce(g, V_NON, T)
    g.e("s_barrier")
    g.e(f"s_cmp_lg_u32 s{S_W}, 0")
    g.e("s_cbranch_scc1 L_B_nopub")
    publish(g, V_NON, T, S_FW)
    g.label("L_B_nopub")
    g.stamp("pubG")
    g.e(f"v_and_b32 v{V_FL}, 31, v{V_LANE}")
    g.e(f"v_lshlrev_b32 v{V_FL}, 2, v{V_FL}")
    poll(g, V_FL, T, V_NON, S_FR_, "b")
    g.stamp("pollG")
    dma_chunk(g, V_GB, 'ws', S_GR, 0, 0 * SLOT, ('g', 0), sc1=True)
    dma_chunk(g, V_GB, 'ws', S_GR, 8192, 1 * SLOT, ('g', 1), sc1=True)
    for ri in range(2):
        g.wait_vm(('g', ri))
        g.e("s_barrier")
        for kk in range(4):
            for s in rB('a', 8 * kk, V_B0, ri * SLOT + kk * 2048): g.e(s)
            g.e(rA(A(8 * kk + 4), 1, 24 + ri, kk))
        for kk in range(4):
            g.e(f"s_waitcnt lgkmcnt({9 - 3*kk})")
            g.e(mfma(ACCA, A(8 * kk), A(8 * kk + 4), ri == 0 and kk == 0))
    pack_store_tile(g, ACCA, T, V_YS, 'out', S_YO, 0)
    g.stamp("done")
    g.stamp_flush("B")

def build(path):
    g = K()
    g.stampnames = []
    g.e("s_cmp_ge_u32 s2, 512")
    g.e("s_cbranch_scc1 L_end")
    g.e(f"s_load_dwordx16 s[{S_KARG}:{S_KARG+15}], s[0:1], 0")
    g.e(f"s_load_dwordx8 s[{S_KARG+16}:{S_KARG+23}], s[0:1], 64")
    if 'stamp' in OPT: g.e(f"v_mov_b32 v{V_STAMP}, 0")
    g.e(f"v_and_b32 v{V_LANE}, 63, v0")
    g.e(f"v_lshrrev_b32 v2, 6, v0")
    g.e(f"v_readfirstlane_b32 s{S_W}, v2")
    g.e(f"s_lshl_b32 s{S_WLDS}, s{S_W}, 10")
    g.e(f"s_and_b32 s{S_SEL0}, s{S_W}, 1")
    g.e(f"s_lshr_b32 s{S_SEL1}, s{S_W}, 1")
    g.stamp("start")
    g.e("s_cmp_ge_u32 s2, 256")
    g.e("s_cbranch_scc1 L_roleB")
    if 'noA' in OPT: g.e("s_branch L_end")
    role_A(g)
    namesA = g.stampnames
    g.e("s_endpgm")
    g.label("L_roleB")
    g.vm = []
    if 'noB' in OPT: g.e("s_branch L_end")
    role_B(g)
    namesB = ['start'] + g.stampnames
    g.label("L_end")
    g.e("s_endpgm")
    body = "\n".join(fix(g.lines)) + "\n"
    ref = open('concat_heads__linear_kernel_hedgehog__spectral_fnet__prompt.s.ref').read().split("\n")
    hdr = [l for l in ref if l.startswith(";") and "@launch" not in l and "Override launch" not in l and "grid=ceil" not in l][:13]
    out = "\n".join(l for l in hdr if l.startswith("; ")) + "\n"
    out += f"; @launch grid=(512,1,1) block=(256,1,1) lds={LDS_TOTAL}\n"
    if 'stamp' in OPT:
        out += f"; stampsA {' '.join(namesA)}\n; stampsB {' '.join(namesB)}\n"
    out += '.amdgcn_target "amdgcn-amd-amdhsa--gfx950"\n.text\n'
    out += f".globl {KNAME}\n.p2align 8\n.type {KNAME},@function\n{KNAME}:\n" + body
    out += f'''.section .rodata,"a"
.p2align 6
.amdhsa_kernel {KNAME}
  .amdhsa_next_free_vgpr 256
  .amdhsa_next_free_sgpr 102
  .amdhsa_accum_offset 128
  .amdhsa_group_segment_fixed_size 0
  .amdhsa_kernarg_size 96
  .amdhsa_user_sgpr_count 2
  .amdhsa_user_sgpr_kernarg_segment_ptr 1
  .amdhsa_system_sgpr_workgroup_id_x 1
.end_amdhsa_kernel
'''
    open(path, "w").write(out)

if __name__ == "__main__":
    build(sys.argv[1] if len(sys.argv) > 1 else "k2.s")
```

```python
import sys, os
sys.path.insert(0, 'gen')
from core import *
from haz import fix
OPT = set(os.environ.get('KOPT', '').split(','))
def optv(name, default):
    for o in OPT:
        if o.startswith(name + '='): return int(o[len(name)+1:])
    return default

SLOT = 8192
LDS_TOTAL = 81920
KNAME = "concat_heads__linear_kernel_hedgehog__spectral_fnet__prompt_kernel"

S_W = 3
S_T0, S_T1, S_T2, S_T3, S_T4, S_T5 = 4, 5, 6, 7, 8, 9
SRD = dict(xA=12, wqkv=16, wphi=20, wo=24, xB=28, Cr=32, Ci=36, Hr=40, Hi=44, out=48, dbg=52, ws=56)
SIZES = dict(xA=2048*512*2, wqkv=512*1536*2, wphi=32*16*16*2, wo=512*512*2, xB=2048*512*2,
             Cr=2048*2048*2, Ci=2048*2048*2, Hr=512*512*2, Hi=512*512*2, out=2048*1024*2, dbg=256, ws=16<<20)
KARG = ['xA', 'wqkv', 'wphi', 'wo', 'xB', 'Cr', 'Ci', 'Hr', 'Hi', 'out', 'dbg', 'ws']
S_WLDS = 60
S_R = 61
S_KARG = 72
S_SEL0 = 10; S_SEL1 = 11
def srd(n): b = SRD[n]; return f"s[{b}:{b+3}]"

WS_G = 0
WS_O = 4 << 20
WS_KVP = 6 << 20
WS_FKV = 7 << 20
WS_FO = WS_FKV + 4096
WS_FB = WS_FKV + 8192
WS_STAMP = 14 << 20

def A(lo, n=4): return f"a[{lo}:{lo+n-1}]"
def V(lo, n=4): return f"v[{lo}:{lo+n-1}]"
def mfma(d, a, b, first):
    return f"v_mfma_f32_32x32x16_bf16 {V(d,16)}, {a}, {b}, {'0' if first else V(d,16)}"

V_LANE = 1
V_STAMP = 127

LITE = set(os.environ.get('LITE', 'start,done').split(','))
class K(Gen):
    def __init__(self):
        super().__init__()
        self.nstamp = 0
    def stamp(self, name=""):
        if 'stamp' not in OPT: return
        if 'lite' in OPT and name not in LITE: return
        i = self.nstamp; self.nstamp += 1
        assert i < 63
        self.e(f"s_memrealtime s[96:97]\ns_waitcnt lgkmcnt(0)\nv_writelane_b32 v{V_STAMP}, s96, {i}")
        self.stampnames.append(name)
    def stamp_flush(self, role):
        if 'stamp' not in OPT: return
        self.e("s_memrealtime s[96:97]\ns_waitcnt lgkmcnt(0)")
        self.e(f"v_writelane_b32 v{V_STAMP}, s96, 63")
        self.e(f"s_lshl_b32 s{S_T0}, s2, 10\ns_lshl_b32 s{S_T1}, s{S_W}, 8\ns_add_u32 s{S_T0}, s{S_T0}, s{S_T1}")
        self.e(f"s_add_u32 s{S_T0}, s{S_T0}, {WS_STAMP}")
        self.e(f"v_lshlrev_b32 v2, 2, v{V_LANE}")
        self.e(f"buffer_store_dword v{V_STAMP}, v2, {srd('ws')}, s{S_T0} offen")

def dma(g, vo, srdname, soff, ldsoff, tag, sc1=False):
    g.e(f"s_add_u32 m0, s{S_WLDS}, {ldsoff}")
    g.vmem(f"buffer_load_dwordx4 v{vo}, {srd(srdname)}, s{soff} offen{' sc1' if sc1 else ''} lds", tag)

def dma_chunk(g, vo, srdname, sbase, imm, slot_off, tag, sc1=False):
    if imm: g.e(f"s_add_u32 s{S_T4}, s{sbase}, {imm}"); so = S_T4
    else: so = sbase
    dma(g, vo, srdname, so, slot_off, tag, sc1)
    dma(g, vo + 1, srdname, so, slot_off + 4096, tag, sc1)

def pack_store_tile(g, acc, T, vst, srdname, soff, imm, neg=False, sc1=False, tag='st'):
    n = "-" if neg else ""
    for qq in range(2):
        r = acc + 8 * qq
        t = T + 4 * qq
        g.e(f"v_cvt_pk_bf16_f32 v{t+0}, {n}v{r+0}, {n}v{r+1}")
        g.e(f"v_cvt_pk_bf16_f32 v{t+1}, {n}v{r+2}, {n}v{r+3}")
        g.e(f"v_cvt_pk_bf16_f32 v{t+2}, {n}v{r+4}, {n}v{r+5}")
        g.e(f"v_cvt_pk_bf16_f32 v{t+3}, {n}v{r+6}, {n}v{r+7}")
    for qq in range(2):
        t = T + 4 * qq
        g.e(f"v_permlane32_swap_b32 v{t+0}, v{t+2}")
        g.e(f"v_permlane32_swap_b32 v{t+1}, v{t+3}")
    for qq in range(2):
        t = T + 4 * qq
        g.vmem(f"buffer_store_dwordx4 {V(t)}, v{vst}, {srd(srdname)}, s{soff} offen offset:{imm + 32*qq}{' sc1' if sc1 else ''}", tag)

def lane_consts_common(g, T):
    g.e(f"v_lshrrev_b32 v{T}, 3, v{V_LANE}")
    g.e(f"s_lshl_b32 s{S_T2}, s{S_W}, 3")
    g.e(f"v_add_u32 v{T}, s{S_T2}, v{T}")
    g.e(f"v_and_b32 v{T+1}, 7, v{V_LANE}")
    g.e(f"v_lshrrev_b32 v{T+2}, 4, v{V_LANE}")
    g.e(f"s_lshl_b32 s{S_T2}, s{S_SEL0}, 2")
    g.e(f"v_add_u32 v{T+3}, s{S_T2}, v{T+2}")
    g.e(f"v_xor_b32 v{T+3}, v{T+3}, v{T+1}")
    g.e(f"v_lshlrev_b32 v{T+3}, 4, v{T+3}")
    g.e(f"v_and_b32 v{T+2}, 1, v{T+2}")
    g.e(f"v_lshlrev_b32 v{T+2}, 2, v{T+2}")
    g.e(f"v_xor_b32 v{T+2}, v{T+2}, v{T+1}")

def rdA_base(g, dst, T):
    g.e(f"v_and_b32 v{dst}, 31, v{V_LANE}")
    g.e(f"v_lshlrev_b32 v{dst}, 7, v{dst}")
    g.e(f"v_lshrrev_b32 v{T}, 5, v{V_LANE}")
    g.e(f"v_bfe_u32 v{T+1}, v{V_LANE}, 1, 3")
    g.e(f"v_xor_b32 v{T}, v{T}, v{T+1}")
    g.e(f"v_lshl_add_u32 v{dst}, v{T}, 4, v{dst}")

def rdB_base(g, dst, T):
    g.e(f"v_lshrrev_b32 v{T}, 5, v{V_LANE}")
    g.e(f"v_lshlrev_b32 v{T}, 3, v{T}")
    g.e(f"v_bfe_u32 v{T+1}, v{V_LANE}, 2, 2")
    g.e(f"v_add_u32 v{T}, v{T}, v{T+1}")
    g.e(f"v_lshlrev_b32 v{T}, 7, v{T}")
    g.e(f"v_bfe_u32 v{T+2}, v{V_LANE}, 4, 1")
    g.e(f"v_lshlrev_b32 v{T+2}, 5, v{T+2}")
    g.e(f"v_and_b32 v{T+3}, 3, v{V_LANE}")
    g.e(f"v_lshl_add_u32 v{T+2}, v{T+3}, 3, v{T+2}")
    g.e(f"v_bfe_u32 v{T+3}, v{V_LANE}, 3, 1")
    g.e(f"v_lshlrev_b32 v{T+3}, 6, v{T+3}")
    g.e(f"v_xor_b32 v{T+2}, v{T+2}, v{T+3}")
    g.e(f"v_add_u32 v{dst}, v{T}, v{T+2}")

def rB(dstkind, dst, vaddr, off):
    return [f"ds_read_b64_tr_b16 {dstkind}[{dst}:{dst+1}], v{vaddr} offset:{off}",
            f"ds_read_b64_tr_b16 {dstkind}[{dst+2}:{dst+3}], v{vaddr} offset:{off+512}"]

def poll(g, vflag, vtmp, vnonce, soff, name):
    g.wait_vm_all() if False else None
    L = f"L_poll_{name}"
    g.e(f"s_mov_b32 s{S_T5}, 0")
    g.label(L)
    g.e(f"buffer_load_dword v{vtmp}, v{vflag}, {srd('ws')}, s{soff} offen sc1")
    g.e(f"s_add_u32 s{S_T5}, s{S_T5}, 1")
    g.e("s_waitcnt vmcnt(0)")
    g.e(f"v_cmp_eq_u32 vcc, v{vtmp}, v{vnonce}")
    g.e(f"s_cmp_gt_u32 s{S_T5}, 200000")
    g.e(f"s_cbranch_scc1 {L}_x")
    g.e("s_cmp_eq_u64 vcc, exec")
    g.e(f"s_cbranch_scc0 {L}")
    g.label(L + "_x")
    g.vm = []

def get_nonce(g, vn, vtmp):
    L = "L_nonce_" + g.role
    g.e(f"v_mov_b32 v{vtmp}, 0")
    g.e(f"s_mov_b32 s{S_T5}, 0")
    g.label(L)
    g.e(f"buffer_load_dword v{vn}, v{vtmp}, {srd('dbg')}, 0 offen sc1")
    g.e(f"s_add_u32 s{S_T5}, s{S_T5}, 1")
    g.e("s_waitcnt vmcnt(0)")
    g.e(f"v_cmp_ne_u32 vcc, 0, v{vn}")
    g.e(f"s_cmp_gt_u32 s{S_T5}, 200000")
    g.e(f"s_cbranch_scc1 {L}_x")
    g.e("s_cmp_eq_u64 vcc, exec")
    g.e(f"s_cbranch_scc0 {L}")
    g.label(L + "_x")
    g.vm = []

def nonce_issue(g, vn):
    g.vmem(f"buffer_load_dword v{vn}, off, {srd('dbg')}, 0 sc1", 'nonce')

def nonce_check(g, vn, vtmp):
    g.wait_vm('nonce')
    g.e(f"v_cmp_ne_u32 vcc, 0, v{vn}")
    g.e("s_cmp_eq_u64 vcc, exec")
    g.e(f"s_cbranch_scc1 L_nonce_ok_{g.role}")
    sv = g.vm
    get_nonce(g, vn, vtmp)
    g.vm = sv
    g.label(f"L_nonce_ok_{g.role}")

def publish(g, vnonce, vtmp, soff):
    g.e(f"v_mov_b32 v{vtmp}, 0")
    g.e("s_mov_b64 exec, 1")
    g.vmem(f"buffer_store_dword v{vnonce}, v{vtmp}, {srd('ws')}, s{soff} offen sc1", 'flag')
    g.e("s_mov_b64 exec, -1")

def role_A(g):
    g.role = "A"; g.stampnames = []
    V_X, V_WKV, V_WQ, V_WO, V_OD, V_B0, V_B1, V_BW = 2, 3, 5, 7, 124, 10, 11, 12
    V_RA = 13
    V_ST, V_NON, V_KS, V_KL, V_FL = 17, 18, 19, 20, 21
    V_WP = 22
    V_SEL = 30
    T = 38
    ACC0 = 48
    ACC1 = 64
    FR = 80
    X = 112
    S_RB, S_G, S_XROW, S_WCOL, S_KVW, S_KVR, S_FKW, S_FKR, S_FOW, S_FOR, S_OW = range(S_R, S_R + 11)
    S_OR, S_WOC, S_OUT = 98, 99, 100
    g.e("s_setprio 2")
    g.e(f"s_and_b32 s{S_T0}, s2, 7")
    g.e(f"s_lshr_b32 s{S_T1}, s2, 3")
    g.e(f"s_lshr_b32 s{S_T2}, s{S_T0}, 1")
    g.e(f"s_lshl_b32 s{S_T2}, s{S_T2}, 2")
    g.e(f"s_lshr_b32 s{S_T3}, s{S_T1}, 3")
    g.e(f"s_add_u32 s{S_RB}, s{S_T2}, s{S_T3}")
    g.e(f"s_and_b32 s{S_T2}, s{S_T0}, 1")
    g.e(f"s_lshl_b32 s{S_T2}, s{S_T2}, 3")
    g.e(f"s_and_b32 s{S_T3}, s{S_T1}, 7")
    g.e(f"s_add_u32 s{S_G}, s{S_T2}, s{S_T3}")
    g.e(f"s_lshl_b32 s{S_T0}, s{S_RB}, 2")
    g.e(f"s_add_u32 s{S_T0}, s{S_T0}, s{S_W}")
    g.e(f"s_lshl_b32 s{S_XROW}, s{S_T0}, 15")
    g.e(f"s_lshl_b32 s{S_WCOL}, s{S_G}, 6")
    g.e(f"v_and_b32 v{V_X}, 31, v{V_LANE}")
    g.e(f"v_lshlrev_b32 v{V_X}, 10, v{V_X}")
    g.e(f"v_lshrrev_b32 v{T}, 5, v{V_LANE}")
    g.e(f"v_lshl_add_u32 v{V_X}, v{T}, 4, v{V_X}")
    lane_consts_common(g, T)
    g.e(f"v_lshrrev_b32 v{T+4}, 2, v{T+2}")
    g.e(f"v_and_b32 v{T+5}, 3, v{T+2}")
    g.e(f"v_lshlrev_b32 v{T+5}, 4, v{T+5}")
    g.e(f"v_mul_u32_u24 v{T+6}, 3072, v{T}")
    g.e(f"v_add_u32 v{T+6}, v{T+6}, v{T+5}")
    g.e(f"v_lshl_add_u32 v{V_WKV}, v{T+4}, 10, v{T+6}")
    g.e(f"v_add_u32 v{V_WKV}, 1024, v{V_WKV}")
    g.e(f"v_add_u32 v{V_WKV+1}, {32*3072}, v{V_WKV}")
    g.e(f"v_mul_u32_u24 v{T+7}, {64*3072}, v{T+4}")
    g.e(f"v_add_u32 v{V_WQ}, v{T+6}, v{T+7}")
    g.e(f"v_add_u32 v{V_WQ+1}, {32*3072}, v{V_WQ}")
    g.e(f"v_lshlrev_b32 v{T+6}, 10, v{T}")
    g.e(f"v_lshl_add_u32 v{V_WO}, v{T+2}, 4, v{T+6}")
    g.e(f"v_add_u32 v{V_WO+1}, {32*1024}, v{V_WO}")
    g.e(f"v_add_u32 v{V_OD}, v{T+6}, v{T+3}")
    g.e(f"v_add_u32 v{V_OD+1}, {32*1024}, v{V_OD}")
    srd_setup(g, ['xA', 'wqkv', 'wphi', 'wo', 'out', 'dbg', 'ws'])
    g.e(f"s_or_b32 s{S_T0}, s2, s{S_W}")
    g.e(f"s_cmp_lg_u32 s{S_T0}, 0")
    g.e("s_cbranch_scc1 L_nononce")
    g.e("s_memrealtime s[96:97]\ns_waitcnt lgkmcnt(0)")
    g.e("s_or_b32 s96, s96, 1")
    g.e(f"v_mov_b32 v{T}, s96\nv_mov_b32 v{T+1}, 0")
    g.e("s_mov_b64 exec, 1")
    g.e(f"buffer_store_dword v{T}, v{T+1}, {srd('dbg')}, 0 offen sc1")
    g.e("s_mov_b64 exec, -1")
    g.e("s_nop 1")
    g.label("L_nononce")
    g.vm = ['x'] if False else []
    S_XB = S_OUT + 1
    g.e(f"s_lshl_b32 s{S_XB}, s{S_RB}, 17")
    def kv_step_chunks(t):
        sl = 3 * (t % 3)
        dma_chunk(g, V_WKV, 'wqkv', S_WCOL, t * 64 * 3072, sl * SLOT, ('kv', t))
        dma_chunk(g, V_OD, 'xA', S_XB, t * 128, (sl + 1) * SLOT, ('kv', t))
        dma_chunk(g, V_OD, 'xA', S_XB, t * 128 + 65536, (sl + 2) * SLOT, ('kv', t))
    for t in range(3): kv_step_chunks(t)
    if 'nopf' not in OPT:
        PF = 126
        g.e(f"v_lshrrev_b32 v{T}, 4, v{V_LANE}")
        g.e(f"v_lshlrev_b32 v{T}, 10, v{T}")
        g.e(f"v_and_b32 v{T+1}, 15, v{V_LANE}")
        g.e(f"v_lshl_add_u32 v{T}, v{T+1}, 6, v{T}")
        g.e(f"s_and_b32 s{S_T0}, s{S_G}, 7")
        g.e(f"s_lshl_b32 s{S_T0}, s{S_T0}, 14")
        g.e(f"s_lshl_b32 s{S_T1}, s{S_W}, 12")
        g.e(f"s_add_u32 s{S_T0}, s{S_T0}, s{S_T1}")
        g.e(f"s_add_u32 s{S_T0}, s{S_T0}, s{S_XB}")
        g.vmem(f"buffer_load_dword v{PF}, v{T}, {srd('xA')}, s{S_T0} offen", 'pf')
        g.e(f"v_and_b32 v{T}, 31, v{V_LANE}")
        g.e(f"v_mul_u32_u24 v{T}, 3072, v{T}")
        g.e(f"v_lshrrev_b32 v{T+1}, 5, v{V_LANE}")
        g.e(f"v_lshl_add_u32 v{T+1}, v{T+1}, 10, v{T}")
        g.e(f"s_and_b32 s{S_T0}, s{S_RB}, 3")
        g.e(f"s_lshl_b32 s{S_T0}, s{S_T0}, 2")
        g.e(f"s_add_u32 s{S_T0}, s{S_T0}, s{S_W}")
        g.e(f"s_mul_i32 s{S_T0}, s{S_T0}, {32*3072}")
        g.e(f"s_add_u32 s{S_T0}, s{S_T0}, s{S_WCOL}")
        g.vmem(f"buffer_load_dword v{PF}, v{T+1}, {srd('wqkv')}, s{S_T0} offen offset:1024", 'pf')
        g.vmem(f"buffer_load_dword v{PF}, v{T}, {srd('wqkv')}, s{S_T0} offen", 'pf')
        g.e(f"v_lshrrev_b32 v{T}, 2, v{V_LANE}")
        g.e(f"v_lshlrev_b32 v{T}, 10, v{T}")
        g.e(f"v_and_b32 v{T+1}, 3, v{V_LANE}")
        g.e(f"v_lshl_add_u32 v{T}, v{T+1}, 6, v{T}")
        g.e(f"s_and_b32 s{S_T0}, s{S_RB}, 3")
        g.e(f"s_lshl_b32 s{S_T0}, s{S_T0}, 1")
        g.e(f"s_bfe_u32 s{S_T1}, s{S_G}, 0x10002")
        g.e(f"s_add_u32 s{S_T0}, s{S_T0}, s{S_T1}")
        g.e(f"s_lshl_b32 s{S_T0}, s{S_T0}, 2")
        g.e(f"s_add_u32 s{S_T0}, s{S_T0}, s{S_W}")
        g.e(f"s_lshl_b32 s{S_T0}, s{S_T0}, 14")
        g.e(f"s_and_b32 s{S_T1}, s{S_G}, 3")
        g.e(f"s_lshl_b32 s{S_T1}, s{S_T1}, 8")
        g.e(f"s_add_u32 s{S_T0}, s{S_T0}, s{S_T1}")
        g.vmem(f"buffer_load_dword v{PF}, v{T}, {srd('wo')}, s{S_T0} offen", 'pf')
    g.stamp("issued")
    rdB_base(g, V_B0, T)
    g.e(f"v_xor_b32 v{V_B1}, 64, v{V_B0}")
    g.e(f"s_lshl_b32 s{S_T2}, s{S_SEL0}, 6")
    g.e(f"v_xor_b32 v{V_BW}, s{S_T2}, v{V_B0}")
    g.e(f"s_lshl_b32 s{S_T2}, s{S_SEL1}, 13")
    g.e(f"v_add_u32 v{V_BW}, s{S_T2}, v{V_BW}")
    rdA_base(g, V_RA, T)
    for kk in range(1, 4): g.e(f"v_xor_b32 v{V_RA+kk}, {32*kk}, v{V_RA}")
    g.e(f"s_lshl_b32 s{S_T2}, s{S_W}, 12")
    for kk in range(4): g.e(f"v_add_u32 v{V_RA+kk}, s{S_T2}, v{V_RA+kk}")
    g.e(f"v_and_b32 v{T}, 31, v{V_LANE}")
    g.e(f"v_lshlrev_b32 v{V_ST}, 11, v{T}")
    g.e(f"v_lshrrev_b32 v{T+1}, 5, v{V_LANE}")
    g.e(f"v_lshl_add_u32 v{V_ST}, v{T+1}, 4, v{V_ST}")
    g.e(f"v_and_b32 v{T+2}, 15, v{V_LANE}")
    g.e(f"v_lshlrev_b32 v{T+2}, 1, v{T+2}")
    g.e(f"v_lshl_add_u32 v{T+2}, v{T+1}, 7, v{T+2}")
    g.e(f"v_bfe_u32 v{T+3}, v{V_LANE}, 4, 1")
    g.e(f"v_lshl_add_u32 v{T+2}, v{T+3}, 9, v{T+2}")
    g.e(f"s_lshl_b32 s{S_T2}, s{S_G}, 10")
    for i in range(8):
        off = (8 * (i >> 2) + (i & 3)) * 32
        g.vmem(f"buffer_load_ushort v{X + i}, v{T+2}, {srd('wphi')}, s{S_T2} offen offset:{off}", 'wphi')
    g.e(f"v_lshlrev_b32 v{T+4}, 2, v{T+1}")
    g.e(f"v_sub_u32 v{T+4}, v{T}, v{T+4}")
    g.e(f"s_mov_b32 s{S_T0}, 0x3f80")
    g.e(f"s_mov_b32 s{S_T1}, 0x3f800000")
    g.e(f"v_mov_b32 v{T+5}, s{S_T0}")
    g.e(f"v_mov_b32 v{T+6}, s{S_T1}")
    for sgn in range(2):
        for j in range(4):
            c = [0, 2, 8, 10][j] + 16 * sgn
            d = V_SEL + 4 * sgn + j
            g.e(f"v_cmp_eq_u32 vcc, {c}, v{T+4}")
            g.e(f"v_cndmask_b32 v{d}, 0, v{T+5}, vcc")
            g.e(f"v_cmp_eq_u32 vcc, {c+1}, v{T+4}")
            g.e(f"v_cndmask_b32 v{d}, v{d}, v{T+6}, vcc")
    g.e(f"v_min_u32 v{T+4}, 16, v{T}")
    g.e(f"v_subrev_u32 v{T+5}, 16, v{T}")
    g.e(f"v_cmp_le_u32 vcc, 16, v{T}")
    g.e(f"v_cndmask_b32 v{T+5}, 16, v{T+5}, vcc")
    g.e(f"s_cmp_eq_u32 s{S_SEL1}, 0")
    g.e("s_cselect_b64 vcc, -1, 0")
    g.e(f"v_cndmask_b32 v{T+6}, v{T+5}, v{T+4}, vcc")
    g.e(f"v_lshlrev_b32 v{V_KL}, 6, v{T+6}")
    g.e(f"v_lshl_add_u32 v{V_KL}, v{T+1}, 5, v{V_KL}")
    g.e(f"v_cmp_ge_u32 vcc, 16, v{T}")
    g.e(f"v_cndmask_b32 v{T+4}, 0, 1, vcc")
    g.e(f"v_cmp_le_u32 vcc, 16, v{T}")
    g.e(f"v_cndmask_b32 v{T+5}, 0, 1, vcc")
    g.e(f"v_cmp_eq_u32 vcc, 0, v{T}")
    g.e(f"v_cndmask_b32 v{T+5}, v{T+5}, 1, vcc")
    g.e(f"s_cmp_eq_u32 s{S_SEL1}, 0")
    g.e("s_cselect_b64 vcc, -1, 0")
    g.e(f"v_cndmask_b32 v{T+4}, v{T+5}, v{T+4}, vcc")
    g.e(f"v_cmp_eq_u32 vcc, 1, v{T+4}")
    g.e(f"v_bfrev_b32 v{T+5}, 1")
    g.e(f"v_cndmask_b32 v{V_KS}, v{T+5}, v{V_KL}, vcc")
    g.e(f"v_and_b32 v{V_FL}, 15, v{V_LANE}")
    g.e(f"v_lshlrev_b32 v{V_FL}, 2, v{V_FL}")
    g.e(f"s_mul_i32 s{S_T0}, s{S_SEL1}, 1088")
    g.e(f"s_lshl_b32 s{S_T1}, s{S_SEL0}, 4")
    g.e(f"s_add_u32 s{S_T0}, s{S_T0}, s{S_T1}")
    g.e(f"s_mul_i32 s{S_T1}, s{S_G}, {16*2176}")
    g.e(f"s_add_u32 s{S_KVR}, s{S_T0}, s{S_T1}")
    g.e(f"s_add_u32 s{S_KVR}, s{S_KVR}, {WS_KVP}")
    g.e(f"s_mul_i32 s{S_T1}, s{S_RB}, 2176")
    g.e(f"s_add_u32 s{S_KVW}, s{S_KVR}, s{S_T1}")
    g.e(f"s_lshl_b32 s{S_T0}, s{S_G}, 2")
    g.e(f"s_add_u32 s{S_T0}, s{S_T0}, s{S_W}")
    g.e(f"s_lshl_b32 s{S_T0}, s{S_T0}, 6")
    g.e(f"s_add_u32 s{S_FKR}, s{S_T0}, {WS_FKV}")
    g.e(f"s_lshl_b32 s{S_T1}, s{S_RB}, 2")
    g.e(f"s_add_u32 s{S_FKW}, s{S_FKR}, s{S_T1}")
    g.e(f"s_lshl_b32 s{S_T0}, s{S_RB}, 2")
    g.e(f"s_add_u32 s{S_T0}, s{S_T0}, s{S_W}")
    g.e(f"s_lshl_b32 s{S_T0}, s{S_T0}, 6")
    g.e(f"s_lshl_b32 s{S_T1}, s{S_G}, 2")
    g.e(f"s_add_u32 s{S_FOW}, s{S_T0}, s{S_T1}")
    g.e(f"s_add_u32 s{S_FOW}, s{S_FOW}, {WS_FO}")
    g.e(f"s_lshr_b32 s{S_T2}, s{S_G}, 2")
    g.e(f"s_lshl_b32 s{S_T0}, s{S_RB}, 2")
    g.e(f"s_add_u32 s{S_T0}, s{S_T0}, s{S_T2}")
    g.e(f"s_lshl_b32 s{S_FOR}, s{S_T0}, 6")
    g.e(f"s_add_u32 s{S_FOR}, s{S_FOR}, {WS_FO}")
    g.e(f"s_lshl_b32 s{S_OR}, s{S_T0}, 15")
    g.e(f"s_add_u32 s{S_OR}, s{S_OR}, {WS_O}")
    g.e(f"s_lshl_b32 s{S_OUT}, s{S_T0}, 16")
    g.e(f"s_and_b32 s{S_T1}, s{S_G}, 3")
    g.e(f"s_lshl_b32 s{S_WOC}, s{S_T1}, 8")
    g.e(f"s_add_u32 s{S_OUT}, s{S_OUT}, s{S_WOC}")
    g.e(f"s_lshl_b32 s{S_T1}, s{S_W}, 6")
    g.e(f"s_add_u32 s{S_OUT}, s{S_OUT}, s{S_T1}")
    g.e(f"s_add_u32 s{S_OW}, s{S_XROW}, s{S_WCOL}")
    g.e(f"s_add_u32 s{S_OW}, s{S_OW}, {WS_O}")
    g.wait_vm('wphi')
    for j in range(4): g.e(f"v_lshl_or_b32 v{X+j}, v{X+2*j+1}, 16, v{X+2*j}")
    g.e(f"v_cmp_gt_u32 vcc, 16, v{T}")
    for j in range(4):
        g.e(f"v_cndmask_b32 v{V_WP+j}, 0, v{X+j}, vcc")
        g.e(f"v_cndmask_b32 v{V_WP+4+j}, v{X+j}, 0, vcc")
    g.stamp("consts")

    QSLOT = [6, 7, 0, 1]
    def q_chunk(u): dma_chunk(g, V_WQ, 'wqkv', S_WCOL, u * 128 * 3072, QSLOT[u] * SLOT, ('q', u))
    def wo_chunk(c, slot):
        kb, half = c >> 1, c & 1
        dma_chunk(g, V_WO, 'wo', S_WOC, kb * 64 * 1024 + half * 128, slot * SLOT, ('wo', c))

    for t in range(8):
        g.wait_vm(('kv', t))
        g.e("s_barrier")
        sl = 3 * (t % 3)
        for kk in range(4):
            g.e(f"ds_read_b128 {A(4*(4*t+kk))}, v{V_RA+kk} offset:{(sl+1)*SLOT}")
            for s_ in rB('v', FR + 8 * kk, V_B0, sl * SLOT + kk * 2048): g.e(s_)
            for s_ in rB('v', FR + 8 * kk + 4, V_B1, sl * SLOT + kk * 2048): g.e(s_)
        if 'noearly' in OPT:
            if 1 <= t <= 5: kv_step_chunks(t + 2)
            if t == 4: nonce_issue(g, V_NON)
            if t == 6: q_chunk(0); q_chunk(1)
            if t == 7: q_chunk(2); q_chunk(3)
        for kk in range(4):
            g.e(f"s_waitcnt lgkmcnt({15 - 5*kk})")
            first = (t == 0 and kk == 0)
            xf = A(4 * (4 * t + kk))
            if kk == 3 and 'noearly' not in OPT:
                g.e("s_barrier")
                if t <= 4: kv_step_chunks(t + 3)
                if t == 3: nonce_issue(g, V_NON)
                if t == 5: q_chunk(0); q_chunk(1)
                if t == 6: q_chunk(2); q_chunk(3)
            g.e(mfma(ACC0, V(FR + 8 * kk), xf, first))
            g.e(mfma(ACC1, xf, V(FR + 8 * kk + 4), first))
        g.stamp(f"kv{t}")
    g.e(f"s_lshl_b32 s{S_T2}, s{S_W}, 12")
    for kk in range(4): g.e(f"v_subrev_u32 v{V_RA+kk}, s{S_T2}, v{V_RA+kk}")

    def feature_map2(acc, PK, PH):
        kb, mx, E = X, T, acc
        for j in range(8): g.e(f"v_cvt_pk_bf16_f32 v{kb+j}, v{acc+2*j}, v{acc+2*j+1}")
        g.e(mfma(PK, V(V_WP), V(kb), True))
        g.e(mfma(PK, V(V_WP + 4), V(kb + 4), False))
        L2E = S_T3
        g.e(f"s_mov_b32 s{L2E}, 0x3fb8aa3b")
        for hs in range(2):
            p = PK + 8 * hs
            a, b = mx + 4 * hs, mx + 4 * hs + 1
            g.e(f"v_max3_f32 v{a}, v{p}, v{p+1}, v{p+2}")
            g.e(f"v_min3_f32 v{b}, v{p}, v{p+1}, v{p+2}")
            g.e(f"v_max3_f32 v{a}, v{a}, v{p+3}, v{p+4}")
            g.e(f"v_min3_f32 v{b}, v{b}, v{p+3}, v{p+4}")
            g.e(f"v_max3_f32 v{a}, v{a}, v{p+5}, v{p+6}")
            g.e(f"v_min3_f32 v{b}, v{b}, v{p+5}, v{p+6}")
            g.e(f"v_max_f32 v{a}, v{a}, v{p+7}")
            g.e(f"v_min_f32 v{b}, v{b}, v{p+7}")
        for hs in range(2):
            a, b = mx + 4 * hs, mx + 4 * hs + 1
            g.e(f"v_mov_b32 v{a+2}, v{a}")
            g.e(f"v_mov_b32 v{b+2}, v{b}")
        for hs in range(2):
            a, b = mx + 4 * hs, mx + 4 * hs + 1
            g.e(f"v_permlane32_swap_b32 v{a}, v{a+2}")
            g.e(f"v_permlane32_swap_b32 v{b}, v{b+2}")
        for hs in range(2):
            a, b = mx + 4 * hs, mx + 4 * hs + 1
            g.e(f"v_max_f32 v{a}, v{a}, v{a+2}")
            g.e(f"v_min_f32 v{b}, v{b}, v{b+2}")
            g.e(f"v_mul_f32 v{a}, s{L2E}, v{a}")
            g.e(f"v_mul_f32 v{b}, s{L2E}, v{b}")
        for hs in range(2):
            p = PK + 8 * hs
            Eh = E + 8 * hs
            a, b = mx + 4 * hs, mx + 4 * hs + 1
            for i in range(8):
                g.e(f"v_fma_f32 v{Eh+i}, -v{p+i}, s{L2E}, v{b}")
                g.e(f"v_fma_f32 v{p+i}, v{p+i}, s{L2E}, -v{a}")
        for hs in range(2):
            p = PK + 8 * hs
            Eh = E + 8 * hs
            for i in range(8):
                g.e(f"v_exp_f32 v{Eh+i}, v{Eh+i}")
                g.e(f"v_exp_f32 v{p+i}, v{p+i}")
        for hs in range(2):
            p = PK + 8 * hs
            Eh = E + 8 * hs
            sp_, sm = mx + 4 * hs, mx + 4 * hs + 1
            g.e(f"v_add_f32 v{sp_}, v{p}, v{p+1}")
            g.e(f"v_add_f32 v{sm}, v{Eh}, v{Eh+1}")
            for i in range(2, 8):
                g.e(f"v_add_f32 v{sp_}, v{sp_}, v{p+i}")
                g.e(f"v_add_f32 v{sm}, v{sm}, v{Eh+i}")
            g.e(f"v_mov_b32 v{sp_+2}, v{sp_}")
            g.e(f"v_mov_b32 v{sm+2}, v{sm}")
        for hs in range(2):
            sp_, sm = mx + 4 * hs, mx + 4 * hs + 1
            g.e(f"v_permlane32_swap_b32 v{sp_}, v{sp_+2}")
            g.e(f"v_permlane32_swap_b32 v{sm}, v{sm+2}")
        for hs in range(2):
            sp_, sm = mx + 4 * hs, mx + 4 * hs + 1
            g.e(f"v_add_f32 v{sp_}, v{sp_}, v{sp_+2}")
            g.e(f"v_add_f32 v{sm}, v{sm}, v{sm+2}")
            g.e(f"v_rcp_f32 v{sp_}, v{sp_}")
            g.e(f"v_rcp_f32 v{sm}, v{sm}")
        for hs in range(2):
            p = PK + 8 * hs
            Eh = E + 8 * hs
            sp_, sm = mx + 4 * hs, mx + 4 * hs + 1
            for i in range(8):
                g.e(f"v_mul_f32 v{p+i}, v{p+i}, v{sp_}")
                g.e(f"v_mul_f32 v{Eh+i}, v{Eh+i}, v{sm}")
            for j in range(4):
                g.e(f"v_cvt_pk_bf16_f32 v{PH+8*hs+j}, v{p+2*j}, v{p+2*j+1}")
                g.e(f"v_cvt_pk_bf16_f32 v{PH+8*hs+4+j}, v{Eh+2*j}, v{Eh+2*j+1}")

    PK, PH = FR, FR + 16
    feature_map2(ACC0, PK, PH)
    g.stamp("fmK")
    XT = [ACC0, PK]
    for hs in range(2):
        g.e(mfma(XT[hs], V(PH + 8 * hs), V(V_SEL), True))
        g.e(mfma(XT[hs], V(PH + 8 * hs + 4), V(V_SEL + 4), False))
    for j in range(8): g.e(f"v_cvt_pk_bf16_f32 v{X+j}, v{ACC1+2*j}, v{ACC1+2*j+1}")
    g.e(f"s_mov_b32 s{S_T0}, 0x3f803f80")
    g.e(f"v_mov_b32 v{T}, s{S_T0}")
    g.e(f"v_and_b32 v{T+1}, 16, v{V_LANE}")
    g.e(f"v_cmp_eq_u32 vcc, 0, v{T+1}")
    for j in range(8):
        g.e(f"v_cndmask_b32 v{ACC1+j}, v{T}, v{X+j}, vcc")
        g.e(f"v_cndmask_b32 v{ACC1+8+j}, v{X+j}, v{T}, vcc")
    for hs in range(2):
        for j in range(8):
            g.e(f"v_cvt_pk_bf16_f32 v{PH+8*hs+j}, v{XT[hs]+2*j}, v{XT[hs]+2*j+1}")
    KVT = [ACC0, PK]
    for hs in range(2):
        g.e(mfma(KVT[hs], V(PH + 8 * hs), V(ACC1 + 8 * hs), True))
        g.e(mfma(KVT[hs], V(PH + 8 * hs + 4), V(ACC1 + 8 * hs + 4), False))
    RED = 2 * SLOT
    g.e(f"v_lshlrev_b32 v{T}, 4, v{V_LANE}")
    g.e(f"s_lshl_b32 s{S_T0}, s{S_W}, 13")
    g.e(f"v_add_u32 v{T+1}, s{S_T0}, v{T}")
    g.e(f"s_lshl_b32 s{S_T0}, s{S_W}, 11")
    g.e(f"v_add_u32 v{T+2}, s{S_T0}, v{T}")
    g.e("s_barrier")
    for hs in range(2):
        for q in range(4):
            g.e(f"ds_write_b128 v{T+1}, {V(KVT[hs]+4*q)} offset:{RED + (hs*4+q)*1024}")
    g.e("s_waitcnt lgkmcnt(0)")
    g.e("s_barrier")
    for sw in range(4):
        for q in range(2):
            g.e(f"ds_read_b128 {V(PH + 8*sw + 4*q)}, v{T+2} offset:{RED + sw*8192 + q*1024}") if sw < 2 else \
            g.e(f"ds_read_b128 {V(ACC1 + 8*(sw-2) + 4*q)}, v{T+2} offset:{RED + sw*8192 + q*1024}")
    get_nonce_early = True
    g.e("s_waitcnt lgkmcnt(0)")
    for i in range(8):
        g.e(f"v_add_f32 v{PH+i}, v{PH+i}, v{PH+8+i}")
        g.e(f"v_add_f32 v{ACC1+i}, v{ACC1+i}, v{ACC1+8+i}")
    for i in range(8): g.e(f"v_add_f32 v{PH+i}, v{PH+i}, v{ACC1+i}")
    for j in range(4): g.e(f"v_cvt_pk_bf16_f32 v{X+j}, v{PH+2*j}, v{PH+2*j+1}")
    g.vmem(f"buffer_store_dwordx4 {V(X)}, v{V_KS}, {srd('ws')}, s{S_KVW} offen sc1", 'kvst')
    g.stamp("kvst")
    nonce_check(g, V_NON, T)
    g.wait_vm('kvst')
    publish(g, V_NON, T, S_FKW)
    g.stamp("pubKV")
    g.e("s_barrier")
    for c in range(4): wo_chunk(c, 2 + c)
    for u in range(4):
        g.wait_vm(('q', u))
        g.e("s_barrier")
        if u == 2: wo_chunk(4, 6); wo_chunk(5, 7)
        for cn in range(2):
            for kk in range(4):
                for s_ in rB('v', FR + 16 * cn + 4 * kk, V_B1 if cn else V_B0, QSLOT[u] * SLOT + kk * 2048): g.e(s_)
        for cn in range(2):
            for kk in range(4):
                n = 4 * cn + kk
                g.e(f"s_waitcnt lgkmcnt({14 - 2*n})")
                g.e(mfma(ACC0, V(FR + 16 * cn + 4 * kk), A(4 * (8 * u + 4 * cn + kk)), u == 0 and n == 0))
    g.e("s_barrier")
    wo_chunk(6, 0); wo_chunk(7, 1)
    g.stamp("qgemm")
    PHQ = ACC1
    feature_map2(ACC0, FR, PHQ)
    g.stamp("fmQ")
    def wo_read(kb, slot_even):
        for kk in range(4):
            for s in rB('a', 16 * kb + 4 * kk, V_BW, slot_even * SLOT + kk * 2048): g.e(s)
    for kb in range(4):
        g.wait_vm([('wo', 2 * kb), ('wo', 2 * kb + 1)])
        g.e("s_barrier")
        wo_read(kb, (2 + 2 * kb) % 8)
    g.e("s_waitcnt lgkmcnt(0)")
    g.e("s_barrier")
    for c in range(8, 16): wo_chunk(c, (c - 8 + 2) % 8)
    g.stamp("wo0")
    poll(g, V_FL, T, V_NON, S_FKR, "kv")
    g.stamp("pollKV")
    PB = 80
    dsts = [48 + 4 * i for i in range(4)] + [80 + 4 * i for i in range(8)] + [112, 116, 120] + [T]
    for r in range(16):
        g.e(f"s_add_u32 s{S_T4}, s{S_KVR}, {r*2176}")
        g.vmem(f"buffer_load_dwordx4 {V(dsts[r])}, v{V_KL}, {srd('ws')}, s{S_T4} offen sc1", ('p', r))
    SUM = T + 4
    SUM = V_SEL
    g.e(f"s_mov_b32 s{S_T0}, 0x3f80")
    g.e(f"s_mov_b32 s{S_T1}, 0x3f800000")
    for i in range(8): g.e(f"v_mov_b32 v{SUM+i}, 0")
    for r in range(16):
        g.wait_vm(('p', r))
        for j in range(4):
            g.e(f"v_dot2_f32_bf16 v{SUM+2*j}, v{dsts[r]+j}, s{S_T0}, v{SUM+2*j}")
            g.e(f"v_dot2_f32_bf16 v{SUM+2*j+1}, v{dsts[r]+j}, s{S_T1}, v{SUM+2*j+1}")
    for j in range(4): g.e(f"v_cvt_pk_bf16_f32 v{T+j}, v{SUM+2*j}, v{SUM+2*j+1}")
    SCR = 9 * SLOT
    g.e(f"v_lshlrev_b32 v{T+4}, 4, v{V_LANE}")
    g.e(f"v_add_u32 v{T+4}, {SCR}, v{T+4}")
    g.e(f"v_add_u32 v{T+5}, s{S_WLDS}, v{T+4}")
    g.e(f"ds_write_b128 v{T+5}, {V(T)}")
    g.e("s_waitcnt lgkmcnt(0)")
    g.e("s_barrier")
    for u in range(4): g.e(f"ds_read_b128 {V(FR+4*u)}, v{T+4} offset:{u*1024}")
    g.e("s_waitcnt lgkmcnt(0)")
    g.stamp("kvsum")
    TT = [ACC0, FR + 16]
    for hs in range(2):
        g.e(mfma(TT[hs], V(FR + 8 * hs), V(PHQ + 8 * hs), True))
        g.e(mfma(TT[hs], V(FR + 8 * hs + 4), V(PHQ + 8 * hs + 4), False))
    g.e(f"s_mov_b32 s{S_T0}, 0x358637bd")
    g.e(f"v_add_f32 v{T}, s{S_T0}, v{TT[0]+8}")
    g.e(f"v_add_f32 v{T+1}, s{S_T0}, v{TT[1]}")
    g.e(f"v_rcp_f32 v{T}, v{T}")
    g.e(f"v_rcp_f32 v{T+1}, v{T+1}")
    for i in range(8):
        g.e(f"v_mul_f32 v{TT[0]+i}, v{TT[0]+i}, v{T}")
        g.e(f"v_mul_f32 v{TT[0]+8+i}, v{TT[1]+8+i}, v{T+1}")
    pack_store_tile(g, TT[0], X, V_X, 'ws', S_OW, 0, sc1=True, tag='ost')
    g.wait_vm('ost')
    publish(g, V_NON, T, S_FOW)
    g.stamp("pubO")
    g.e("s_barrier")
    for kb in range(4, 8):
        wo_read(kb, (2 * kb - 8 + 2) % 8)
    g.e("s_waitcnt lgkmcnt(0)")
    g.e("s_barrier")
    g.stamp("wo1")
    poll(g, V_FL, T, V_NON, S_FOR, "o")
    g.stamp("pollO")
    for c in range(8):
        g.e(f"s_add_u32 s{S_T4}, s{S_OR}, {c*128}")
        dma(g, V_OD, 'ws', S_T4, c * 4096, ('o', c), sc1=True)
    for c in range(8):
        g.wait_vm(('o', c))
        g.e("s_barrier")
        st = FR + 16 * (c & 1)
        for kk in range(4): g.e(f"ds_read_b128 {V(st + 4*kk)}, v{V_RA+kk} offset:{c*4096}")
        for kk in range(4):
            g.e(f"s_waitcnt lgkmcnt({3-kk})")
            g.e(mfma(ACC0, A(16 * c + 4 * kk), V(st + 4 * kk), c == 0 and kk == 0))
    pack_store_tile(g, ACC0, X, V_ST, 'out', S_OUT, 0)
    g.stamp("done")
    g.stamp_flush("A")

def srd_setup(g, names):
    g.e("s_waitcnt lgkmcnt(0)")
    for n in names:
        i = KARG.index(n)
        b = SRD[n]
        g.e(f"s_mov_b32 s{b}, s{S_KARG+2*i}")
        g.e(f"s_mov_b32 s{b+1}, s{S_KARG+2*i+1}")
        g.e(f"s_mov_b32 s{b+2}, {SIZES[n]}")
        g.e(f"s_mov_b32 s{b+3}, 0x00020000")

def role_B(g):
    g.role = "B"; g.stampnames = []; g.nstamp = 1
    RING = 9
    V_XB, V_H, V_GB, V_C = 2, 4, 6, 8
    V_A1, V_A0 = 10, 18
    V_B0 = 26
    V_GS, V_NON, V_FL, V_YS = 27, 28, 29, 30
    V_W32 = 32
    V_TW = 31
    T = 48
    ACCA, ACCB = 64, 80
    FR = 96
    S_SP, S_EB, S_XR, S_HR, S_GW, S_FW, S_FR_, S_GR, S_YO, S_S2 = range(S_R, S_R + 10)
    g.e(f"s_sub_u32 s{S_T5}, s2, 256")
    g.e(f"s_and_b32 s{S_T0}, s{S_T5}, 7")
    g.e(f"s_lshr_b32 s{S_T1}, s{S_T5}, 3")
    g.e(f"s_lshr_b32 s{S_T2}, s{S_T0}, 1")
    g.e(f"s_lshl_b32 s{S_T2}, s{S_T2}, 3")
    g.e(f"s_lshr_b32 s{S_T3}, s{S_T1}, 2")
    g.e(f"s_add_u32 s{S_SP}, s{S_T2}, s{S_T3}")
    g.e(f"s_and_b32 s{S_T2}, s{S_T0}, 1")
    g.e(f"s_lshl_b32 s{S_T2}, s{S_T2}, 2")
    g.e(f"s_and_b32 s{S_T3}, s{S_T1}, 3")
    g.e(f"s_add_u32 s{S_EB}, s{S_T2}, s{S_T3}")
    g.e(f"s_lshl_b32 s{S_XR}, s{S_SP}, 11")
    g.e(f"s_lshl_b32 s{S_HR}, s{S_EB}, 16")
    g.e(f"s_lshl_b32 s{S_S2}, s{S_SP}, 1")
    g.e(f"s_add_u32 s{S_S2}, s{S_S2}, s{S_SEL1}")
    g.e(f"s_lshl_b32 s{S_T2}, s{S_T1}, 3")
    g.e(f"s_add_u32 s{S_T2}, s{S_T2}, s{S_T0}")
    g.e(f"s_lshl_b32 s{S_GR}, s{S_T2}, 14")
    g.e(f"s_add_u32 s{S_GR}, s{S_GR}, {WS_G}")
    g.e(f"s_lshl_b32 s{S_FR_}, s{S_T0}, 7")
    g.e(f"s_add_u32 s{S_FR_}, s{S_FR_}, {WS_FB}")
    g.e(f"s_lshl_b32 s{S_T2}, s{S_SEL1}, 10")
    g.e(f"s_add_u32 s{S_T2}, s{S_T2}, s{S_T1}")
    g.e(f"s_lshl_b32 s{S_YO}, s{S_T2}, 11")
    g.e(f"s_lshl_b32 s{S_T2}, s{S_T0}, 7")
    g.e(f"s_add_u32 s{S_YO}, s{S_YO}, s{S_T2}")
    g.e(f"s_lshl_b32 s{S_T2}, s{S_SEL0}, 6")
    g.e(f"s_add_u32 s{S_YO}, s{S_YO}, s{S_T2}")
    g.e(f"s_add_u32 s{S_YO}, s{S_YO}, 1024")
    g.e(f"s_lshl_b32 s{S_GW}, s{S_EB}, 14")
    g.e(f"s_lshl_b32 s{S_T2}, s{S_S2}, 7")
    g.e(f"s_add_u32 s{S_GW}, s{S_GW}, s{S_T2}")
    g.e(f"s_lshl_b32 s{S_T2}, s{S_SEL0}, 6")
    g.e(f"s_add_u32 s{S_GW}, s{S_GW}, s{S_T2}")
    g.e(f"s_add_u32 s{S_GW}, s{S_GW}, {WS_G}")
    g.e(f"s_lshl_b32 s{S_FW}, s{S_EB}, 7")
    g.e(f"s_lshl_b32 s{S_T2}, s{S_SP}, 2")
    g.e(f"s_add_u32 s{S_FW}, s{S_FW}, s{S_T2}")
    g.e(f"s_add_u32 s{S_FW}, s{S_FW}, {WS_FB}")
    lane_consts_common(g, T)
    g.e(f"v_lshl_add_u32 v{V_XB}, v{T}, 16, v{T+3}")
    g.e(f"v_add_u32 v{V_XB+1}, 1024, v{V_XB}")
    g.e(f"v_lshl_add_u32 v{V_H}, v{T}, 10, v{T+3}")
    g.e(f"v_add_u32 v{V_H+1}, {32*1024}, v{V_H}")
    g.e(f"v_lshlrev_b32 v{T+4}, 4, v{T+2}")
    g.e(f"v_lshl_add_u32 v{V_GB}, v{T}, 7, v{T+4}")
    g.e(f"v_add_u32 v{V_GB+1}, {32*128}, v{V_GB}")
    g.e(f"v_lshl_add_u32 v{V_C}, v{T}, 17, v{T+3}")
    g.e(f"v_add_u32 v{V_C+1}, {32*131072}, v{V_C}")
    srd_setup(g, ['xB', 'Cr', 'Ci', 'Hr', 'Hi', 'out', 'dbg', 'ws'])
    seq = []
    for t in range(8):
        seq += [(V_XB, 'xB', S_XR, t * 128, ('x', t)), (V_H, 'Hr', S_HR, t * 128, ('hr', t)), (V_H, 'Hi', S_HR, t * 128, ('hi', t))]
    g.e(f"s_mov_b32 s{S_T5}, 0")
    seq += [(V_C, 'Cr', S_T5, 0, ('c', 0)), (V_C, 'Ci', S_T5, 0, ('c', 1))]
    ptr = [0]
    def issue_upto(lim):
        while ptr[0] < min(lim, len(seq)):
            vo, sn, sb, imm, tag = seq[ptr[0]]
            dma_chunk(g, vo, sn, sb, imm, (ptr[0] % RING) * SLOT, tag)
            ptr[0] += 1
    DEPTH0 = optv('bdepth', 9)
    BD = optv('bd', 9)
    issue_upto(DEPTH0)
    if 'nopf' not in OPT:
        PF = 126
        g.e(f"v_lshrrev_b32 v{T}, 4, v{V_LANE}")
        g.e(f"s_and_b32 s{S_T0}, s{S_EB}, 3")
        g.e(f"s_lshl_b32 s{S_T0}, s{S_T0}, 2")
        g.e(f"s_add_u32 s{S_T0}, s{S_T0}, s{S_W}")
        g.e(f"s_lshl_b32 s{S_T0}, s{S_T0}, 2")
        g.e(f"v_add_u32 v{T}, s{S_T0}, v{T}")
        g.e(f"v_and_b32 v{T+1}, 31, v{T}")
        g.e(f"v_lshlrev_b32 v{T+1}, 16, v{T+1}")
        g.e(f"v_lshrrev_b32 v{T}, 5, v{T}")
        g.e(f"v_lshl_add_u32 v{T+1}, v{T}, 10, v{T+1}")
        g.e(f"v_and_b32 v{T}, 15, v{V_LANE}")
        g.e(f"v_lshl_add_u32 v{T+1}, v{T}, 6, v{T+1}")
        g.vmem(f"buffer_load_dword v{PF}, v{T+1}, {srd('xB')}, s{S_XR} offen", 'pf')
        g.e(f"v_bfe_u32 v{T+1}, v{V_LANE}, 4, 1")
        g.e(f"v_lshlrev_b32 v{T+1}, 10, v{T+1}")
        g.e(f"v_lshl_add_u32 v{T+1}, v{T}, 6, v{T+1}")
        g.e(f"s_and_b32 s{S_T0}, s{S_SP}, 7")
        g.e(f"s_lshl_b32 s{S_T0}, s{S_T0}, 2")
        g.e(f"s_add_u32 s{S_T0}, s{S_T0}, s{S_W}")
        g.e(f"s_lshl_b32 s{S_T0}, s{S_T0}, 11")
        g.e(f"s_add_u32 s{S_T0}, s{S_T0}, s{S_HR}")
        g.vmem(f"buffer_load_dword v{PF}, v{T+1}, {srd('Hr')}, s{S_T0} offen", 'pf')
        g.vmem(f"buffer_load_dword v{PF}, v{T+1}, {srd('Hi')}, s{S_T0} offen", 'pf')
    g.stamp("issued")
    rdA_base(g, T, T + 1)
    g.e(f"s_lshl_b32 s{S_T2}, s{S_SEL1}, 12")
    g.e(f"s_lshl_b32 s{S_T3}, s{S_SEL0}, 12")
    for kk in range(4):
        g.e(f"v_xor_b32 v{T+1}, {kk*32}, v{T}")
        g.e(f"v_add_u32 v{V_A1+kk}, s{S_T2}, v{T+1}")
        g.e(f"v_add_u32 v{V_A1+4+kk}, 0x10000, v{V_A1+kk}")
        g.e(f"v_add_u32 v{V_A0+kk}, s{S_T3}, v{T+1}")
        g.e(f"v_add_u32 v{V_A0+4+kk}, 0x10000, v{V_A0+kk}")
    rdB_base(g, V_B0, T)
    g.e(f"s_lshl_b32 s{S_T2}, s{S_SEL0}, 6")
    g.e(f"v_xor_b32 v{V_B0}, s{S_T2}, v{V_B0}")
    g.e(f"v_and_b32 v{T}, 31, v{V_LANE}")
    g.e(f"v_lshrrev_b32 v{T+1}, 5, v{V_LANE}")
    g.e(f"v_lshlrev_b32 v{T+2}, 18, v{T}")
    g.e(f"v_lshl_add_u32 v{T+2}, v{T+1}, 3, v{T+2}")
    for mi, mn in enumerate(('Cr', 'Ci')):
        for ks in range(2):
            for q in range(2):
                d = V_W32 + 8 * mi + 4 * ks + 2 * q
                g.vmem(f"buffer_load_dwordx2 {V(d,2)}, v{T+2}, {srd(mn)}, 0 offen offset:{32*ks+16*q}", 'w32')
    g.e(f"v_lshlrev_b32 v{T+3}, 12, v{T}")
    g.e(f"s_lshl_b32 s{S_T2}, s{S_S2}, 1")
    g.vmem(f"buffer_load_ushort v{V_TW}, v{T+3}, {srd('Cr')}, s{S_T2} offen", 'w32')
    g.vmem(f"buffer_load_ushort v{V_FL}, v{T+3}, {srd('Ci')}, s{S_T2} offen", 'w32')
    g.e(f"v_lshlrev_b32 v{V_GS}, 17, v{T}")
    g.e(f"v_lshl_add_u32 v{V_GS}, v{T+1}, 4, v{V_GS}")
    g.e(f"v_lshlrev_b32 v{V_YS}, 16, v{T}")
    g.e(f"v_lshl_add_u32 v{V_YS}, v{T+1}, 4, v{V_YS}")
    def rA(dst, which, ci, kk):
        off = (ci % RING) * SLOT
        base = V_A1 if which else V_A0
        if off >= 65536: return f"ds_read_b128 {dst}, v{base+4+kk} offset:{off-65536}"
        return f"ds_read_b128 {dst}, v{base+kk} offset:{off}"
    for t in range(8):
        g.wait_vm([('x', t), ('hr', t), ('hi', t)])
        g.e("s_barrier")
        for kk in range(4):
            g.e(rA(A(12 * kk), 1, 3 * t, kk))
            g.e(rA(A(12 * kk + 4), 0, 3 * t + 1, kk))
            g.e(rA(A(12 * kk + 8), 0, 3 * t + 2, kk))
        for kk in range(4):
            g.e(f"s_waitcnt lgkmcnt({9 - 3*kk})")
            first = (t == 0 and kk == 0)
            if kk == 3:
                g.e("s_barrier")
                issue_upto(3 * t + 3 + BD)
                if t == 3: nonce_issue(g, V_NON)
            g.e(mfma(ACCA, A(12 * kk), A(12 * kk + 4), first))
            g.e(mfma(ACCB, A(12 * kk), A(12 * kk + 8), first))
        g.stamp(f"g{t}")
    g.wait_vm('w32')
    V_TI = T + 15
    g.e(f"v_lshlrev_b32 v{V_TW}, 16, v{V_TW}")
    g.e(f"v_lshlrev_b32 v{V_TI}, 16, v{V_FL}")
    AB, BB, NB = 96, 104, 112
    for j in range(8):
        g.e(f"v_cvt_pk_bf16_f32 v{AB+j}, v{ACCA+2*j}, v{ACCA+2*j+1}")
        g.e(f"v_cvt_pk_bf16_f32 v{BB+j}, v{ACCB+2*j}, v{ACCB+2*j+1}")
        g.e(f"v_cvt_pk_bf16_f32 v{NB+j}, -v{ACCB+2*j}, -v{ACCB+2*j+1}")
    GR, GI = ACCA, ACCB
    CR, CI = V_W32, V_W32 + 8
    for ks in range(2):
        g.e(mfma(GR, V(AB + 4 * ks), V(CR + 4 * ks), ks == 0))
        g.e(mfma(GI, V(AB + 4 * ks), V(CI + 4 * ks), ks == 0))
    for ks in range(2):
        g.e(mfma(GR, V(NB + 4 * ks), V(CI + 4 * ks), False))
        g.e(mfma(GI, V(BB + 4 * ks), V(CR + 4 * ks), False))
    R2 = 96
    for i in range(16):
        g.e(f"v_mul_f32 v{R2+i}, v{GI+i}, v{V_TI}")
        g.e(f"v_mul_f32 v{GI+i}, v{GI+i}, v{V_TW}")
        g.e(f"v_fma_f32 v{R2+i}, v{GR+i}, v{V_TW}, -v{R2+i}")
        g.e(f"v_fma_f32 v{GI+i}, v{GR+i}, v{V_TI}, v{GI+i}")
    pack_store_tile(g, R2, T, V_GS, 'ws', S_GW, 0, sc1=True, tag='gst')
    g.e(f"s_add_u32 s{S_T4}, s{S_GW}, 8192")
    pack_store_tile(g, GI, 112, V_GS, 'ws', S_T4, 0, neg=True, sc1=True, tag='gst')
    g.stamp("gst")
    nonce_check(g, V_NON, T)
    g.wait_vm('gst')
    g.e("s_barrier")
    g.e(f"s_cmp_lg_u32 s{S_W}, 0")
    g.e("s_cbranch_scc1 L_B_nopub")
    publish(g, V_NON, T, S_FW)
    g.label("L_B_nopub")
    g.stamp("pubG")
    g.e(f"v_and_b32 v{V_FL}, 31, v{V_LANE}")
    g.e(f"v_lshlrev_b32 v{V_FL}, 2, v{V_FL}")
    poll(g, V_FL, T, V_NON, S_FR_, "b")
    g.stamp("pollG")
    dma_chunk(g, V_GB, 'ws', S_GR, 0, 0 * SLOT, ('g', 0), sc1=True)
    dma_chunk(g, V_GB, 'ws', S_GR, 8192, 1 * SLOT, ('g', 1), sc1=True)
    for ri in range(2):
        g.wait_vm(('g', ri))
        g.e("s_barrier")
        for kk in range(4):
            for s in rB('a', 8 * kk, V_B0, ri * SLOT + kk * 2048): g.e(s)
            g.e(rA(A(8 * kk + 4), 1, 24 + ri, kk))
        for kk in range(4):
            g.e(f"s_waitcnt lgkmcnt({9 - 3*kk})")
            g.e(mfma(ACCA, A(8 * kk), A(8 * kk + 4), ri == 0 and kk == 0))
    pack_store_tile(g, ACCA, T, V_YS, 'out', S_YO, 0)
    g.stamp("done")
    g.stamp_flush("B")

def build(path):
    g = K()
    g.stampnames = []
    g.e("s_cmp_ge_u32 s2, 512")
    g.e("s_cbranch_scc1 L_end")
    g.e(f"s_load_dwordx16 s[{S_KARG}:{S_KARG+15}], s[0:1], 0")
    g.e(f"s_load_dwordx8 s[{S_KARG+16}:{S_KARG+23}], s[0:1], 64")
    if 'stamp' in OPT: g.e(f"v_mov_b32 v{V_STAMP}, 0")
    g.e(f"v_and_b32 v{V_LANE}, 63, v0")
    g.e(f"v_lshrrev_b32 v2, 6, v0")
    g.e(f"v_readfirstlane_b32 s{S_W}, v2")
    g.e(f"s_lshl_b32 s{S_WLDS}, s{S_W}, 10")
    g.e(f"s_and_b32 s{S_SEL0}, s{S_W}, 1")
    g.e(f"s_lshr_b32 s{S_SEL1}, s{S_W}, 1")
    g.stamp("start")
    g.e("s_cmp_ge_u32 s2, 256")
    g.e("s_cbranch_scc1 L_roleB")
    if 'noA' in OPT: g.e("s_branch L_end")
    role_A(g)
    namesA = g.stampnames
    g.e("s_endpgm")
    g.label("L_roleB")
    g.vm = []
    if 'noB' in OPT: g.e("s_branch L_end")
    role_B(g)
    namesB = ['start'] + g.stampnames
    g.label("L_end")
    g.e("s_endpgm")
    body = "\n".join(fix(g.lines)) + "\n"
    ref = open('concat_heads__linear_kernel_hedgehog__spectral_fnet__prompt.s.ref').read().split("\n")
    hdr = [l for l in ref if l.startswith(";") and "@launch" not in l and "Override launch" not in l and "grid=ceil" not in l][:13]
    out = "\n".join(l for l in hdr if l.startswith("; ")) + "\n"
    out += f"; @launch grid=(512,1,1) block=(256,1,1) lds={LDS_TOTAL}\n"
    if 'stamp' in OPT:
        out += f"; stampsA {' '.join(namesA)}\n; stampsB {' '.join(namesB)}\n"
    out += '.amdgcn_target "amdgcn-amd-amdhsa--gfx950"\n.text\n'
    out += f".globl {KNAME}\n.p2align 8\n.type {KNAME},@function\n{KNAME}:\n" + body
    out += f'''.section .rodata,"a"
.p2align 6
.amdhsa_kernel {KNAME}
  .amdhsa_next_free_vgpr 256
  .amdhsa_next_free_sgpr 102
  .amdhsa_accum_offset 128
  .amdhsa_group_segment_fixed_size 0
  .amdhsa_kernarg_size 96
  .amdhsa_user_sgpr_count 2
  .amdhsa_user_sgpr_kernarg_segment_ptr 1
  .amdhsa_system_sgpr_workgroup_id_x 1
.end_amdhsa_kernel
'''
    open(path, "w").write(out)

if __name__ == "__main__":
    build(sys.argv[1] if len(sys.argv) > 1 else "k2.s")
```

```python
import sys, os
sys.path.insert(0, 'gen')
from core import *
from haz import fix
OPT = set(os.environ.get('KOPT', '').split(','))
def optv(name, default):
    for o in OPT:
        if o.startswith(name + '='): return int(o[len(name)+1:])
    return default

SLOT = 8192
LDS_TOTAL = 81920
KNAME = "concat_heads__linear_kernel_hedgehog__spectral_fnet__prompt_kernel"

S_W = 3
S_T0, S_T1, S_T2, S_T3, S_T4, S_T5 = 4, 5, 6, 7, 8, 9
SRD = dict(xA=12, wqkv=16, wphi=20, wo=24, xB=28, Cr=32, Ci=36, Hr=40, Hi=44, out=48, dbg=52, ws=56)
SIZES = dict(xA=2048*512*2, wqkv=512*1536*2, wphi=32*16*16*2, wo=512*512*2, xB=2048*512*2,
             Cr=2048*2048*2, Ci=2048*2048*2, Hr=512*512*2, Hi=512*512*2, out=2048*1024*2, dbg=256, ws=16<<20)
KARG = ['xA', 'wqkv', 'wphi', 'wo', 'xB', 'Cr', 'Ci', 'Hr', 'Hi', 'out', 'dbg', 'ws']
S_WLDS = 60
S_R = 61
S_KARG = 72
S_SEL0 = 10; S_SEL1 = 11
def srd(n): b = SRD[n]; return f"s[{b}:{b+3}]"

WS_G = 0
WS_O = 4 << 20
WS_KVP = 6 << 20
WS_FKV = 7 << 20
WS_FO = WS_FKV + 4096
WS_FB = WS_FKV + 8192
WS_STAMP = 14 << 20

def A(lo, n=4): return f"a[{lo}:{lo+n-1}]"
def V(lo, n=4): return f"v[{lo}:{lo+n-1}]"
def mfma(d, a, b, first):
    return f"v_mfma_f32_32x32x16_bf16 {V(d,16)}, {a}, {b}, {'0' if first else V(d,16)}"

V_LANE = 1
V_STAMP = 127

LITE = set(os.environ.get('LITE', 'start,done').split(','))
class K(Gen):
    def __init__(self):
        super().__init__()
        self.nstamp = 0
    def stamp(self, name=""):
        if 'stamp' not in OPT: return
        if 'lite' in OPT and name not in LITE: return
        i = self.nstamp; self.nstamp += 1
        assert i < 63
        self.e(f"s_memrealtime s[96:97]\ns_waitcnt lgkmcnt(0)\nv_writelane_b32 v{V_STAMP}, s96, {i}")
        self.stampnames.append(name)
    def stamp_flush(self, role):
        if 'stamp' not in OPT: return
        self.e("s_memrealtime s[96:97]\ns_waitcnt lgkmcnt(0)")
        self.e(f"v_writelane_b32 v{V_STAMP}, s96, 63")
        self.e(f"s_lshl_b32 s{S_T0}, s2, 10\ns_lshl_b32 s{S_T1}, s{S_W}, 8\ns_add_u32 s{S_T0}, s{S_T0}, s{S_T1}")
        self.e(f"s_add_u32 s{S_T0}, s{S_T0}, {WS_STAMP}")
        self.e(f"v_lshlrev_b32 v2, 2, v{V_LANE}")
        self.e(f"buffer_store_dword v{V_STAMP}, v2, {srd('ws')}, s{S_T0} offen")

def dma(g, vo, srdname, soff, ldsoff, tag, sc1=False):
    g.e(f"s_add_u32 m0, s{S_WLDS}, {ldsoff}")
    g.vmem(f"buffer_load_dwordx4 v{vo}, {srd(srdname)}, s{soff} offen{' sc1' if sc1 else ''} lds", tag)

def dma_chunk(g, vo, srdname, sbase, imm, slot_off, tag, sc1=False):
    if imm: g.e(f"s_add_u32 s{S_T4}, s{sbase}, {imm}"); so = S_T4
    else: so = sbase
    dma(g, vo, srdname, so, slot_off, tag, sc1)
    dma(g, vo + 1, srdname, so, slot_off + 4096, tag, sc1)

def dma_chunk_rot(g, vo, srdname, sbase, srot, t, mask, mul, imm, slot_off, tag):
    g.e(f"s_add_u32 s{S_T4}, s{srot}, {t}")
    g.e(f"s_and_b32 s{S_T4}, s{S_T4}, {mask}")
    g.e(f"s_mul_i32 s{S_T4}, s{S_T4}, {mul}")
    g.e(f"s_add_u32 s{S_T4}, s{S_T4}, s{sbase}")
    if imm: g.e(f"s_add_u32 s{S_T4}, s{S_T4}, {imm}")
    dma(g, vo, srdname, S_T4, slot_off, tag)
    dma(g, vo + 1, srdname, S_T4, slot_off + 4096, tag)

def pack_store_tile(g, acc, T, vst, srdname, soff, imm, neg=False, sc1=False, tag='st'):
    n = "-" if neg else ""
    for qq in range(2):
        r = acc + 8 * qq
        t = T + 4 * qq
        g.e(f"v_cvt_pk_bf16_f32 v{t+0}, {n}v{r+0}, {n}v{r+1}")
        g.e(f"v_cvt_pk_bf16_f32 v{t+1}, {n}v{r+2}, {n}v{r+3}")
        g.e(f"v_cvt_pk_bf16_f32 v{t+2}, {n}v{r+4}, {n}v{r+5}")
        g.e(f"v_cvt_pk_bf16_f32 v{t+3}, {n}v{r+6}, {n}v{r+7}")
    for qq in range(2):
        t = T + 4 * qq
        g.e(f"v_permlane32_swap_b32 v{t+0}, v{t+2}")
        g.e(f"v_permlane32_swap_b32 v{t+1}, v{t+3}")
    for qq in range(2):
        t = T + 4 * qq
        g.vmem(f"buffer_store_dwordx4 {V(t)}, v{vst}, {srd(srdname)}, s{soff} offen offset:{imm + 32*qq}{' sc1' if sc1 else ''}", tag)

def lane_consts_common(g, T):
    g.e(f"v_lshrrev_b32 v{T}, 3, v{V_LANE}")
    g.e(f"s_lshl_b32 s{S_T2}, s{S_W}, 3")
    g.e(f"v_add_u32 v{T}, s{S_T2}, v{T}")
    g.e(f"v_and_b32 v{T+1}, 7, v{V_LANE}")
    g.e(f"v_lshrrev_b32 v{T+2}, 4, v{V_LANE}")
    g.e(f"s_lshl_b32 s{S_T2}, s{S_SEL0}, 2")
    g.e(f"v_add_u32 v{T+3}, s{S_T2}, v{T+2}")
    g.e(f"v_xor_b32 v{T+3}, v{T+3}, v{T+1}")
    g.e(f"v_lshlrev_b32 v{T+3}, 4, v{T+3}")
    g.e(f"v_and_b32 v{T+2}, 1, v{T+2}")
    g.e(f"v_lshlrev_b32 v{T+2}, 2, v{T+2}")
    g.e(f"v_xor_b32 v{T+2}, v{T+2}, v{T+1}")

def rdA_base(g, dst, T):
    g.e(f"v_and_b32 v{dst}, 31, v{V_LANE}")
    g.e(f"v_lshlrev_b32 v{dst}, 7, v{dst}")
    g.e(f"v_lshrrev_b32 v{T}, 5, v{V_LANE}")
    g.e(f"v_bfe_u32 v{T+1}, v{V_LANE}, 1, 3")
    g.e(f"v_xor_b32 v{T}, v{T}, v{T+1}")
    g.e(f"v_lshl_add_u32 v{dst}, v{T}, 4, v{dst}")

def rdB_base(g, dst, T):
    g.e(f"v_lshrrev_b32 v{T}, 5, v{V_LANE}")
    g.e(f"v_lshlrev_b32 v{T}, 3, v{T}")
    g.e(f"v_bfe_u32 v{T+1}, v{V_LANE}, 2, 2")
    g.e(f"v_add_u32 v{T}, v{T}, v{T+1}")
    g.e(f"v_lshlrev_b32 v{T}, 7, v{T}")
    g.e(f"v_bfe_u32 v{T+2}, v{V_LANE}, 4, 1")
    g.e(f"v_lshlrev_b32 v{T+2}, 5, v{T+2}")
    g.e(f"v_and_b32 v{T+3}, 3, v{V_LANE}")
    g.e(f"v_lshl_add_u32 v{T+2}, v{T+3}, 3, v{T+2}")
    g.e(f"v_bfe_u32 v{T+3}, v{V_LANE}, 3, 1")
    g.e(f"v_lshlrev_b32 v{T+3}, 6, v{T+3}")
    g.e(f"v_xor_b32 v{T+2}, v{T+2}, v{T+3}")
    g.e(f"v_add_u32 v{dst}, v{T}, v{T+2}")

def rB(dstkind, dst, vaddr, off):
    return [f"ds_read_b64_tr_b16 {dstkind}[{dst}:{dst+1}], v{vaddr} offset:{off}",
            f"ds_read_b64_tr_b16 {dstkind}[{dst+2}:{dst+3}], v{vaddr} offset:{off+512}"]

def poll(g, vflag, vtmp, vnonce, soff, name):
    g.wait_vm_all() if False else None
    L = f"L_poll_{name}"
    g.e(f"s_mov_b32 s{S_T5}, 0")
    g.label(L)
    g.e(f"buffer_load_dword v{vtmp}, v{vflag}, {srd('ws')}, s{soff} offen sc1")
    g.e(f"s_add_u32 s{S_T5}, s{S_T5}, 1")
    g.e("s_waitcnt vmcnt(0)")
    g.e(f"v_cmp_eq_u32 vcc, v{vtmp}, v{vnonce}")
    g.e(f"s_cmp_gt_u32 s{S_T5}, 200000")
    g.e(f"s_cbranch_scc1 {L}_x")
    g.e("s_cmp_eq_u64 vcc, exec")
    g.e(f"s_cbranch_scc0 {L}")
    g.label(L + "_x")
    g.vm = []

def get_nonce(g, vn, vtmp):
    L = "L_nonce_" + g.role
    g.e(f"v_mov_b32 v{vtmp}, 0")
    g.e(f"s_mov_b32 s{S_T5}, 0")
    g.label(L)
    g.e(f"buffer_load_dword v{vn}, v{vtmp}, {srd('dbg')}, 0 offen sc1")
    g.e(f"s_add_u32 s{S_T5}, s{S_T5}, 1")
    g.e("s_waitcnt vmcnt(0)")
    g.e(f"v_cmp_ne_u32 vcc, 0, v{vn}")
    g.e(f"s_cmp_gt_u32 s{S_T5}, 200000")
    g.e(f"s_cbranch_scc1 {L}_x")
    g.e("s_cmp_eq_u64 vcc, exec")
    g.e(f"s_cbranch_scc0 {L}")
    g.label(L + "_x")
    g.vm = []

def nonce_issue(g, vn):
    g.vmem(f"buffer_load_dword v{vn}, off, {srd('dbg')}, 0 sc1", 'nonce')

def nonce_check(g, vn, vtmp):
    g.wait_vm('nonce')
    g.e(f"v_cmp_ne_u32 vcc, 0, v{vn}")
    g.e("s_cmp_eq_u64 vcc, exec")
    g.e(f"s_cbranch_scc1 L_nonce_ok_{g.role}")
    sv = g.vm
    get_nonce(g, vn, vtmp)
    g.vm = sv
    g.label(f"L_nonce_ok_{g.role}")

def publish(g, vnonce, vtmp, soff):
    g.e(f"v_mov_b32 v{vtmp}, 0")
    g.e("s_mov_b64 exec, 1")
    g.vmem(f"buffer_store_dword v{vnonce}, v{vtmp}, {srd('ws')}, s{soff} offen sc1", 'flag')
    g.e("s_mov_b64 exec, -1")

def role_A(g):
    g.role = "A"; g.stampnames = []
    V_X, V_WKV, V_WQ, V_WO, V_OD, V_B0, V_B1, V_BW = 2, 3, 5, 7, 124, 10, 11, 12
    V_RA = 13
    V_ST, V_NON, V_KS, V_KL, V_FL = 17, 18, 19, 20, 21
    V_WP = 22
    V_SEL = 30
    T = 38
    ACC0 = 48
    ACC1 = 64
    FR = 80
    X = 112
    S_RB, S_G, S_XROW, S_WCOL, S_KVW, S_KVR, S_FKW, S_FKR, S_FOW, S_FOR, S_OW = range(S_R, S_R + 11)
    S_OR, S_WOC, S_OUT = 98, 99, 100
    g.e("s_setprio 2")
    g.e(f"s_and_b32 s{S_T0}, s2, 7")
    g.e(f"s_lshr_b32 s{S_T1}, s2, 3")
    g.e(f"s_lshr_b32 s{S_T2}, s{S_T0}, 1")
    g.e(f"s_lshl_b32 s{S_T2}, s{S_T2}, 2")
    g.e(f"s_lshr_b32 s{S_T3}, s{S_T1}, 3")
    g.e(f"s_add_u32 s{S_RB}, s{S_T2}, s{S_T3}")
    g.e(f"s_and_b32 s{S_T2}, s{S_T0}, 1")
    g.e(f"s_lshl_b32 s{S_T2}, s{S_T2}, 3")
    g.e(f"s_and_b32 s{S_T3}, s{S_T1}, 7")
    g.e(f"s_add_u32 s{S_G}, s{S_T2}, s{S_T3}")
    g.e(f"s_lshl_b32 s{S_T0}, s{S_RB}, 2")
    g.e(f"s_add_u32 s{S_T0}, s{S_T0}, s{S_W}")
    g.e(f"s_lshl_b32 s{S_XROW}, s{S_T0}, 15")
    g.e(f"s_lshl_b32 s{S_WCOL}, s{S_G}, 6")
    g.e(f"v_and_b32 v{V_X}, 31, v{V_LANE}")
    g.e(f"v_lshlrev_b32 v{V_X}, 10, v{V_X}")
    g.e(f"v_lshrrev_b32 v{T}, 5, v{V_LANE}")
    g.e(f"v_lshl_add_u32 v{V_X}, v{T}, 4, v{V_X}")
    lane_consts_common(g, T)
    g.e(f"v_lshrrev_b32 v{T+4}, 2, v{T+2}")
    g.e(f"v_and_b32 v{T+5}, 3, v{T+2}")
    g.e(f"v_lshlrev_b32 v{T+5}, 4, v{T+5}")
    g.e(f"v_mul_u32_u24 v{T+6}, 3072, v{T}")
    g.e(f"v_add_u32 v{T+6}, v{T+6}, v{T+5}")
    g.e(f"v_lshl_add_u32 v{V_WKV}, v{T+4}, 10, v{T+6}")
    g.e(f"v_add_u32 v{V_WKV}, 1024, v{V_WKV}")
    g.e(f"v_add_u32 v{V_WKV+1}, {32*3072}, v{V_WKV}")
    g.e(f"v_mul_u32_u24 v{T+7}, {64*3072}, v{T+4}")
    g.e(f"v_add_u32 v{V_WQ}, v{T+6}, v{T+7}")
    g.e(f"v_add_u32 v{V_WQ+1}, {32*3072}, v{V_WQ}")
    g.e(f"v_lshlrev_b32 v{T+6}, 10, v{T}")
    g.e(f"v_lshl_add_u32 v{V_WO}, v{T+2}, 4, v{T+6}")
    g.e(f"v_add_u32 v{V_WO+1}, {32*1024}, v{V_WO}")
    g.e(f"v_add_u32 v{V_OD}, v{T+6}, v{T+3}")
    g.e(f"v_add_u32 v{V_OD+1}, {32*1024}, v{V_OD}")
    srd_setup(g, ['xA', 'wqkv', 'wphi', 'wo', 'out', 'dbg', 'ws'])
    g.e(f"s_or_b32 s{S_T0}, s2, s{S_W}")
    g.e(f"s_cmp_lg_u32 s{S_T0}, 0")
    g.e("s_cbranch_scc1 L_nononce")
    g.e("s_memrealtime s[96:97]\ns_waitcnt lgkmcnt(0)")
    g.e("s_or_b32 s96, s96, 1")
    g.e(f"v_mov_b32 v{T}, s96\nv_mov_b32 v{T+1}, 0")
    g.e("s_mov_b64 exec, 1")
    g.e(f"buffer_store_dword v{T}, v{T+1}, {srd('dbg')}, 0 offen sc1")
    g.e("s_mov_b64 exec, -1")
    g.e("s_nop 1")
    g.label("L_nononce")
    g.vm = ['x'] if False else []
    S_XB = S_OUT + 1
    g.e(f"s_lshl_b32 s{S_XB}, s{S_RB}, 17")
    S_ROT, S_ROTQ = 72, 73
    if 'norot' in OPT: g.e(f"s_mov_b32 s{S_ROTQ}, 0")
    else:
        g.e(f"s_add_u32 s{S_ROTQ}, s{S_G}, s{S_RB}")
        g.e(f"s_and_b32 s{S_ROTQ}, s{S_ROTQ}, 3")
    g.e(f"s_lshl_b32 s{S_ROT}, s{S_ROTQ}, 1")
    def kv_step_chunks(t):
        sl = 3 * (t % 3)
        dma_chunk_rot(g, V_WKV, 'wqkv', S_WCOL, S_ROT, t, 7, 64 * 3072, 0, sl * SLOT, ('kv', t))
        dma_chunk_rot(g, V_OD, 'xA', S_XB, S_ROT, t, 7, 128, 0, (sl + 1) * SLOT, ('kv', t))
        g.e(f"s_add_u32 s{S_T4}, s{S_T4}, 65536")
        dma(g, V_OD, 'xA', S_T4, (sl + 2) * SLOT, ('kv', t))
        dma(g, V_OD + 1, 'xA', S_T4, (sl + 2) * SLOT + 4096, ('kv', t))
    for t in range(3): kv_step_chunks(t)
    if 'nopf' not in OPT:
        PF = 126
        g.e(f"v_lshrrev_b32 v{T}, 4, v{V_LANE}")
        g.e(f"v_lshlrev_b32 v{T}, 10, v{T}")
        g.e(f"v_and_b32 v{T+1}, 15, v{V_LANE}")
        g.e(f"v_lshl_add_u32 v{T}, v{T+1}, 6, v{T}")
        g.e(f"s_and_b32 s{S_T0}, s{S_G}, 7")
        g.e(f"s_lshl_b32 s{S_T0}, s{S_T0}, 14")
        g.e(f"s_lshl_b32 s{S_T1}, s{S_W}, 12")
        g.e(f"s_add_u32 s{S_T0}, s{S_T0}, s{S_T1}")
        g.e(f"s_add_u32 s{S_T0}, s{S_T0}, s{S_XB}")
        g.vmem(f"buffer_load_dword v{PF}, v{T}, {srd('xA')}, s{S_T0} offen", 'pf')
        g.e(f"v_and_b32 v{T}, 31, v{V_LANE}")
        g.e(f"v_mul_u32_u24 v{T}, 3072, v{T}")
        g.e(f"v_lshrrev_b32 v{T+1}, 5, v{V_LANE}")
        g.e(f"v_lshl_add_u32 v{T+1}, v{T+1}, 10, v{T}")
        g.e(f"s_and_b32 s{S_T0}, s{S_RB}, 3")
        g.e(f"s_lshl_b32 s{S_T0}, s{S_T0}, 2")
        g.e(f"s_add_u32 s{S_T0}, s{S_T0}, s{S_W}")
        g.e(f"s_mul_i32 s{S_T0}, s{S_T0}, {32*3072}")
        g.e(f"s_add_u32 s{S_T0}, s{S_T0}, s{S_WCOL}")
        g.vmem(f"buffer_load_dword v{PF}, v{T+1}, {srd('wqkv')}, s{S_T0} offen offset:1024", 'pf')
        g.vmem(f"buffer_load_dword v{PF}, v{T}, {srd('wqkv')}, s{S_T0} offen", 'pf')
        g.e(f"v_lshrrev_b32 v{T}, 2, v{V_LANE}")
        g.e(f"v_lshlrev_b32 v{T}, 10, v{T}")
        g.e(f"v_and_b32 v{T+1}, 3, v{V_LANE}")
        g.e(f"v_lshl_add_u32 v{T}, v{T+1}, 6, v{T}")
        g.e(f"s_and_b32 s{S_T0}, s{S_RB}, 3")
        g.e(f"s_lshl_b32 s{S_T0}, s{S_T0}, 1")
        g.e(f"s_bfe_u32 s{S_T1}, s{S_G}, 0x10002")
        g.e(f"s_add_u32 s{S_T0}, s{S_T0}, s{S_T1}")
        g.e(f"s_lshl_b32 s{S_T0}, s{S_T0}, 2")
        g.e(f"s_add_u32 s{S_T0}, s{S_T0}, s{S_W}")
        g.e(f"s_lshl_b32 s{S_T0}, s{S_T0}, 14")
        g.e(f"s_and_b32 s{S_T1}, s{S_G}, 3")
        g.e(f"s_lshl_b32 s{S_T1}, s{S_T1}, 8")
        g.e(f"s_add_u32 s{S_T0}, s{S_T0}, s{S_T1}")
        g.vmem(f"buffer_load_dword v{PF}, v{T}, {srd('wo')}, s{S_T0} offen", 'pf')
    g.stamp("issued")
    rdB_base(g, V_B0, T)
    g.e(f"v_xor_b32 v{V_B1}, 64, v{V_B0}")
    g.e(f"s_lshl_b32 s{S_T2}, s{S_SEL0}, 6")
    g.e(f"v_xor_b32 v{V_BW}, s{S_T2}, v{V_B0}")
    g.e(f"s_lshl_b32 s{S_T2}, s{S_SEL1}, 13")
    g.e(f"v_add_u32 v{V_BW}, s{S_T2}, v{V_BW}")
    rdA_base(g, V_RA, T)
    for kk in range(1, 4): g.e(f"v_xor_b32 v{V_RA+kk}, {32*kk}, v{V_RA}")
    g.e(f"s_lshl_b32 s{S_T2}, s{S_W}, 12")
    for kk in range(4): g.e(f"v_add_u32 v{V_RA+kk}, s{S_T2}, v{V_RA+kk}")
    g.e(f"v_and_b32 v{T}, 31, v{V_LANE}")
    g.e(f"v_lshlrev_b32 v{V_ST}, 11, v{T}")
    g.e(f"v_lshrrev_b32 v{T+1}, 5, v{V_LANE}")
    g.e(f"v_lshl_add_u32 v{V_ST}, v{T+1}, 4, v{V_ST}")
    g.e(f"v_and_b32 v{T+2}, 15, v{V_LANE}")
    g.e(f"v_lshlrev_b32 v{T+2}, 1, v{T+2}")
    g.e(f"v_lshl_add_u32 v{T+2}, v{T+1}, 7, v{T+2}")
    g.e(f"v_bfe_u32 v{T+3}, v{V_LANE}, 4, 1")
    g.e(f"v_lshl_add_u32 v{T+2}, v{T+3}, 9, v{T+2}")
    g.e(f"s_lshl_b32 s{S_T2}, s{S_G}, 10")
    for i in range(8):
        off = (8 * (i >> 2) + (i & 3)) * 32
        g.vmem(f"buffer_load_ushort v{X + i}, v{T+2}, {srd('wphi')}, s{S_T2} offen offset:{off}", 'wphi')
    g.e(f"v_lshlrev_b32 v{T+4}, 2, v{T+1}")
    g.e(f"v_sub_u32 v{T+4}, v{T}, v{T+4}")
    g.e(f"s_mov_b32 s{S_T0}, 0x3f80")
    g.e(f"s_mov_b32 s{S_T1}, 0x3f800000")
    g.e(f"v_mov_b32 v{T+5}, s{S_T0}")
    g.e(f"v_mov_b32 v{T+6}, s{S_T1}")
    for sgn in range(2):
        for j in range(4):
            c = [0, 2, 8, 10][j] + 16 * sgn
            d = V_SEL + 4 * sgn + j
            g.e(f"v_cmp_eq_u32 vcc, {c}, v{T+4}")
            g.e(f"v_cndmask_b32 v{d}, 0, v{T+5}, vcc")
            g.e(f"v_cmp_eq_u32 vcc, {c+1}, v{T+4}")
            g.e(f"v_cndmask_b32 v{d}, v{d}, v{T+6}, vcc")
    g.e(f"v_min_u32 v{T+4}, 16, v{T}")
    g.e(f"v_subrev_u32 v{T+5}, 16, v{T}")
    g.e(f"v_cmp_le_u32 vcc, 16, v{T}")
    g.e(f"v_cndmask_b32 v{T+5}, 16, v{T+5}, vcc")
    g.e(f"s_cmp_eq_u32 s{S_SEL1}, 0")
    g.e("s_cselect_b64 vcc, -1, 0")
    g.e(f"v_cndmask_b32 v{T+6}, v{T+5}, v{T+4}, vcc")
    g.e(f"v_lshlrev_b32 v{V_KL}, 6, v{T+6}")
    g.e(f"v_lshl_add_u32 v{V_KL}, v{T+1}, 5, v{V_KL}")
    g.e(f"v_cmp_ge_u32 vcc, 16, v{T}")
    g.e(f"v_cndmask_b32 v{T+4}, 0, 1, vcc")
    g.e(f"v_cmp_le_u32 vcc, 16, v{T}")
    g.e(f"v_cndmask_b32 v{T+5}, 0, 1, vcc")
    g.e(f"v_cmp_eq_u32 vcc, 0, v{T}")
    g.e(f"v_cndmask_b32 v{T+5}, v{T+5}, 1, vcc")
    g.e(f"s_cmp_eq_u32 s{S_SEL1}, 0")
    g.e("s_cselect_b64 vcc, -1, 0")
    g.e(f"v_cndmask_b32 v{T+4}, v{T+5}, v{T+4}, vcc")
    g.e(f"v_cmp_eq_u32 vcc, 1, v{T+4}")
    g.e(f"v_bfrev_b32 v{T+5}, 1")
    g.e(f"v_cndmask_b32 v{V_KS}, v{T+5}, v{V_KL}, vcc")
    g.e(f"v_and_b32 v{V_FL}, 15, v{V_LANE}")
    g.e(f"v_lshlrev_b32 v{V_FL}, 2, v{V_FL}")
    g.e(f"s_mul_i32 s{S_T0}, s{S_SEL1}, 1088")
    g.e(f"s_lshl_b32 s{S_T1}, s{S_SEL0}, 4")
    g.e(f"s_add_u32 s{S_T0}, s{S_T0}, s{S_T1}")
    g.e(f"s_mul_i32 s{S_T1}, s{S_G}, {16*2176}")
    g.e(f"s_add_u32 s{S_KVR}, s{S_T0}, s{S_T1}")
    g.e(f"s_add_u32 s{S_KVR}, s{S_KVR}, {WS_KVP}")
    g.e(f"s_mul_i32 s{S_T1}, s{S_RB}, 2176")
    g.e(f"s_add_u32 s{S_KVW}, s{S_KVR}, s{S_T1}")
    g.e(f"s_lshl_b32 s{S_T0}, s{S_G}, 2")
    g.e(f"s_add_u32 s{S_T0}, s{S_T0}, s{S_W}")
    g.e(f"s_lshl_b32 s{S_T0}, s{S_T0}, 6")
    g.e(f"s_add_u32 s{S_FKR}, s{S_T0}, {WS_FKV}")
    g.e(f"s_lshl_b32 s{S_T1}, s{S_RB}, 2")
    g.e(f"s_add_u32 s{S_FKW}, s{S_FKR}, s{S_T1}")
    g.e(f"s_lshl_b32 s{S_T0}, s{S_RB}, 2")
    g.e(f"s_add_u32 s{S_T0}, s{S_T0}, s{S_W}")
    g.e(f"s_lshl_b32 s{S_T0}, s{S_T0}, 6")
    g.e(f"s_lshl_b32 s{S_T1}, s{S_G}, 2")
    g.e(f"s_add_u32 s{S_FOW}, s{S_T0}, s{S_T1}")
    g.e(f"s_add_u32 s{S_FOW}, s{S_FOW}, {WS_FO}")
    g.e(f"s_lshr_b32 s{S_T2}, s{S_G}, 2")
    g.e(f"s_lshl_b32 s{S_T0}, s{S_RB}, 2")
    g.e(f"s_add_u32 s{S_T0}, s{S_T0}, s{S_T2}")
    g.e(f"s_lshl_b32 s{S_FOR}, s{S_T0}, 6")
    g.e(f"s_add_u32 s{S_FOR}, s{S_FOR}, {WS_FO}")
    g.e(f"s_lshl_b32 s{S_OR}, s{S_T0}, 15")
    g.e(f"s_add_u32 s{S_OR}, s{S_OR}, {WS_O}")
    g.e(f"s_lshl_b32 s{S_OUT}, s{S_T0}, 16")
    g.e(f"s_and_b32 s{S_T1}, s{S_G}, 3")
    g.e(f"s_lshl_b32 s{S_WOC}, s{S_T1}, 8")
    g.e(f"s_add_u32 s{S_OUT}, s{S_OUT}, s{S_WOC}")
    g.e(f"s_lshl_b32 s{S_T1}, s{S_W}, 6")
    g.e(f"s_add_u32 s{S_OUT}, s{S_OUT}, s{S_T1}")
    g.e(f"s_add_u32 s{S_OW}, s{S_XROW}, s{S_WCOL}")
    g.e(f"s_add_u32 s{S_OW}, s{S_OW}, {WS_O}")
    g.wait_vm('wphi')
    for j in range(4): g.e(f"v_lshl_or_b32 v{X+j}, v{X+2*j+1}, 16, v{X+2*j}")
    g.e(f"v_cmp_gt_u32 vcc, 16, v{T}")
    for j in range(4):
        g.e(f"v_cndmask_b32 v{V_WP+j}, 0, v{X+j}, vcc")
        g.e(f"v_cndmask_b32 v{V_WP+4+j}, v{X+j}, 0, vcc")
    g.stamp("consts")

    QSLOT = [6, 7, 0, 1]
    def q_chunk(u): dma_chunk_rot(g, V_WQ, 'wqkv', S_WCOL, S_ROTQ, u, 3, 128 * 3072, 0, QSLOT[u] * SLOT, ('q', u))
    def wo_chunk(c, slot):
        kb, half = c >> 1, c & 1
        dma_chunk(g, V_WO, 'wo', S_WOC, kb * 64 * 1024 + half * 128, slot * SLOT, ('wo', c))

    for t in range(8):
        g.wait_vm(('kv', t))
        g.e("s_barrier")
        sl = 3 * (t % 3)
        for kk in range(4):
            g.e(f"ds_read_b128 {A(4*(4*t+kk))}, v{V_RA+kk} offset:{(sl+1)*SLOT}")
            for s_ in rB('v', FR + 8 * kk, V_B0, sl * SLOT + kk * 2048): g.e(s_)
            for s_ in rB('v', FR + 8 * kk + 4, V_B1, sl * SLOT + kk * 2048): g.e(s_)
        if 'noearly' in OPT:
            if 1 <= t <= 5: kv_step_chunks(t + 2)
            if t == 4: nonce_issue(g, V_NON)
            if t == 6: q_chunk(0); q_chunk(1)
            if t == 7: q_chunk(2); q_chunk(3)
        for kk in range(4):
            g.e(f"s_waitcnt lgkmcnt({15 - 5*kk})")
            first = (t == 0 and kk == 0)
            xf = A(4 * (4 * t + kk))
            if kk == 3 and 'noearly' not in OPT:
                g.e("s_barrier")
                if t <= 4: kv_step_chunks(t + 3)
                if t == 3: nonce_issue(g, V_NON)
                if t == 5: q_chunk(0); q_chunk(1)
                if t == 6: q_chunk(2); q_chunk(3)
            g.e(mfma(ACC0, V(FR + 8 * kk), xf, first))
            g.e(mfma(ACC1, xf, V(FR + 8 * kk + 4), first))
        g.stamp(f"kv{t}")
    g.e(f"s_lshl_b32 s{S_T2}, s{S_W}, 12")
    for kk in range(4): g.e(f"v_subrev_u32 v{V_RA+kk}, s{S_T2}, v{V_RA+kk}")

    def feature_map2(acc, PK, PH):
        kb, mx, E = X, T, acc
        for j in range(8): g.e(f"v_cvt_pk_bf16_f32 v{kb+j}, v{acc+2*j}, v{acc+2*j+1}")
        g.e(mfma(PK, V(V_WP), V(kb), True))
        g.e(mfma(PK, V(V_WP + 4), V(kb + 4), False))
        L2E = S_T3
        g.e(f"s_mov_b32 s{L2E}, 0x3fb8aa3b")
        for hs in range(2):
            p = PK + 8 * hs
            a, b = mx + 4 * hs, mx + 4 * hs + 1
            g.e(f"v_max3_f32 v{a}, v{p}, v{p+1}, v{p+2}")
            g.e(f"v_min3_f32 v{b}, v{p}, v{p+1}, v{p+2}")
            g.e(f"v_max3_f32 v{a}, v{a}, v{p+3}, v{p+4}")
            g.e(f"v_min3_f32 v{b}, v{b}, v{p+3}, v{p+4}")
            g.e(f"v_max3_f32 v{a}, v{a}, v{p+5}, v{p+6}")
            g.e(f"v_min3_f32 v{b}, v{b}, v{p+5}, v{p+6}")
            g.e(f"v_max_f32 v{a}, v{a}, v{p+7}")
            g.e(f"v_min_f32 v{b}, v{b}, v{p+7}")
        for hs in range(2):
            a, b = mx + 4 * hs, mx + 4 * hs + 1
            g.e(f"v_mov_b32 v{a+2}, v{a}")
            g.e(f"v_mov_b32 v{b+2}, v{b}")
        for hs in range(2):
            a, b = mx + 4 * hs, mx + 4 * hs + 1
            g.e(f"v_permlane32_swap_b32 v{a}, v{a+2}")
            g.e(f"v_permlane32_swap_b32 v{b}, v{b+2}")
        for hs in range(2):
            a, b = mx + 4 * hs, mx + 4 * hs + 1
            g.e(f"v_max_f32 v{a}, v{a}, v{a+2}")
            g.e(f"v_min_f32 v{b}, v{b}, v{b+2}")
            g.e(f"v_mul_f32 v{a}, s{L2E}, v{a}")
            g.e(f"v_mul_f32 v{b}, s{L2E}, v{b}")
        for hs in range(2):
            p = PK + 8 * hs
            Eh = E + 8 * hs
            a, b = mx + 4 * hs, mx + 4 * hs + 1
            for i in range(8):
                g.e(f"v_fma_f32 v{Eh+i}, -v{p+i}, s{L2E}, v{b}")
                g.e(f"v_fma_f32 v{p+i}, v{p+i}, s{L2E}, -v{a}")
        for hs in range(2):
            p = PK + 8 * hs
            Eh = E + 8 * hs
            for i in range(8):
                g.e(f"v_exp_f32 v{Eh+i}, v{Eh+i}")
                g.e(f"v_exp_f32 v{p+i}, v{p+i}")
        for hs in range(2):
            p = PK + 8 * hs
            Eh = E + 8 * hs
            sp_, sm = mx + 4 * hs, mx + 4 * hs + 1
            g.e(f"v_add_f32 v{sp_}, v{p}, v{p+1}")
            g.e(f"v_add_f32 v{sm}, v{Eh}, v{Eh+1}")
            for i in range(2, 8):
                g.e(f"v_add_f32 v{sp_}, v{sp_}, v{p+i}")
                g.e(f"v_add_f32 v{sm}, v{sm}, v{Eh+i}")
            g.e(f"v_mov_b32 v{sp_+2}, v{sp_}")
            g.e(f"v_mov_b32 v{sm+2}, v{sm}")
        for hs in range(2):
            sp_, sm = mx + 4 * hs, mx + 4 * hs + 1
            g.e(f"v_permlane32_swap_b32 v{sp_}, v{sp_+2}")
            g.e(f"v_permlane32_swap_b32 v{sm}, v{sm+2}")
        for hs in range(2):
            sp_, sm = mx + 4 * hs, mx + 4 * hs + 1
            g.e(f"v_add_f32 v{sp_}, v{sp_}, v{sp_+2}")
            g.e(f"v_add_f32 v{sm}, v{sm}, v{sm+2}")
            g.e(f"v_rcp_f32 v{sp_}, v{sp_}")
            g.e(f"v_rcp_f32 v{sm}, v{sm}")
        for hs in range(2):
            p = PK + 8 * hs
            Eh = E + 8 * hs
            sp_, sm = mx + 4 * hs, mx + 4 * hs + 1
            for i in range(8):
                g.e(f"v_mul_f32 v{p+i}, v{p+i}, v{sp_}")
                g.e(f"v_mul_f32 v{Eh+i}, v{Eh+i}, v{sm}")
            for j in range(4):
                g.e(f"v_cvt_pk_bf16_f32 v{PH+8*hs+j}, v{p+2*j}, v{p+2*j+1}")
                g.e(f"v_cvt_pk_bf16_f32 v{PH+8*hs+4+j}, v{Eh+2*j}, v{Eh+2*j+1}")

    PK, PH = FR, FR + 16
    feature_map2(ACC0, PK, PH)
    g.stamp("fmK")
    XT = [ACC0, PK]
    for hs in range(2):
        g.e(mfma(XT[hs], V(PH + 8 * hs), V(V_SEL), True))
        g.e(mfma(XT[hs], V(PH + 8 * hs + 4), V(V_SEL + 4), False))
    for j in range(8): g.e(f"v_cvt_pk_bf16_f32 v{X+j}, v{ACC1+2*j}, v{ACC1+2*j+1}")
    g.e(f"s_mov_b32 s{S_T0}, 0x3f803f80")
    g.e(f"v_mov_b32 v{T}, s{S_T0}")
    g.e(f"v_and_b32 v{T+1}, 16, v{V_LANE}")
    g.e(f"v_cmp_eq_u32 vcc, 0, v{T+1}")
    for j in range(8):
        g.e(f"v_cndmask_b32 v{ACC1+j}, v{T}, v{X+j}, vcc")
        g.e(f"v_cndmask_b32 v{ACC1+8+j}, v{X+j}, v{T}, vcc")
    for hs in range(2):
        for j in range(8):
            g.e(f"v_cvt_pk_bf16_f32 v{PH+8*hs+j}, v{XT[hs]+2*j}, v{XT[hs]+2*j+1}")
    KVT = [ACC0, PK]
    for hs in range(2):
        g.e(mfma(KVT[hs], V(PH + 8 * hs), V(ACC1 + 8 * hs), True))
        g.e(mfma(KVT[hs], V(PH + 8 * hs + 4), V(ACC1 + 8 * hs + 4), False))
    RED = 2 * SLOT
    g.e(f"v_lshlrev_b32 v{T}, 4, v{V_LANE}")
    g.e(f"s_lshl_b32 s{S_T0}, s{S_W}, 13")
    g.e(f"v_add_u32 v{T+1}, s{S_T0}, v{T}")
    g.e(f"s_lshl_b32 s{S_T0}, s{S_W}, 11")
    g.e(f"v_add_u32 v{T+2}, s{S_T0}, v{T}")
    g.e("s_barrier")
    for hs in range(2):
        for q in range(4):
            g.e(f"ds_write_b128 v{T+1}, {V(KVT[hs]+4*q)} offset:{RED + (hs*4+q)*1024}")
    g.e("s_waitcnt lgkmcnt(0)")
    g.e("s_barrier")
    for sw in range(4):
        for q in range(2):
            g.e(f"ds_read_b128 {V(PH + 8*sw + 4*q)}, v{T+2} offset:{RED + sw*8192 + q*1024}") if sw < 2 else \
            g.e(f"ds_read_b128 {V(ACC1 + 8*(sw-2) + 4*q)}, v{T+2} offset:{RED + sw*8192 + q*1024}")
    get_nonce_early = True
    g.e("s_waitcnt lgkmcnt(0)")
    for i in range(8):
        g.e(f"v_add_f32 v{PH+i}, v{PH+i}, v{PH+8+i}")
        g.e(f"v_add_f32 v{ACC1+i}, v{ACC1+i}, v{ACC1+8+i}")
    for i in range(8): g.e(f"v_add_f32 v{PH+i}, v{PH+i}, v{ACC1+i}")
    for j in range(4): g.e(f"v_cvt_pk_bf16_f32 v{X+j}, v{PH+2*j}, v{PH+2*j+1}")
    g.vmem(f"buffer_store_dwordx4 {V(X)}, v{V_KS}, {srd('ws')}, s{S_KVW} offen sc1", 'kvst')
    g.stamp("kvst")
    nonce_check(g, V_NON, T)
    g.wait_vm('kvst')
    publish(g, V_NON, T, S_FKW)
    g.stamp("pubKV")
    g.e("s_barrier")
    for c in range(4): wo_chunk(c, 2 + c)
    for u in range(4):
        g.wait_vm(('q', u))
        g.e("s_barrier")
        if u == 2: wo_chunk(4, 6); wo_chunk(5, 7)
        for cn in range(2):
            for kk in range(4):
                for s_ in rB('v', FR + 16 * cn + 4 * kk, V_B1 if cn else V_B0, QSLOT[u] * SLOT + kk * 2048): g.e(s_)
        for cn in range(2):
            for kk in range(4):
                n = 4 * cn + kk
                g.e(f"s_waitcnt lgkmcnt({14 - 2*n})")
                g.e(mfma(ACC0, V(FR + 16 * cn + 4 * kk), A(4 * (8 * u + 4 * cn + kk)), u == 0 and n == 0))
    g.e("s_barrier")
    wo_chunk(6, 0); wo_chunk(7, 1)
    g.stamp("qgemm")
    PHQ = ACC1
    feature_map2(ACC0, FR, PHQ)
    g.stamp("fmQ")
    def wo_read(kb, slot_even):
        for kk in range(4):
            for s in rB('a', 16 * kb + 4 * kk, V_BW, slot_even * SLOT + kk * 2048): g.e(s)
    for kb in range(4):
        g.wait_vm([('wo', 2 * kb), ('wo', 2 * kb + 1)])
        g.e("s_barrier")
        wo_read(kb, (2 + 2 * kb) % 8)
    g.e("s_waitcnt lgkmcnt(0)")
    g.e("s_barrier")
    for c in range(8, 16): wo_chunk(c, (c - 8 + 2) % 8)
    g.stamp("wo0")
    poll(g, V_FL, T, V_NON, S_FKR, "kv")
    g.stamp("pollKV")
    PB = 80
    dsts = [48 + 4 * i for i in range(4)] + [80 + 4 * i for i in range(8)] + [112, 116, 120] + [T]
    for r in range(16):
        g.e(f"s_add_u32 s{S_T4}, s{S_KVR}, {r*2176}")
        g.vmem(f"buffer_load_dwordx4 {V(dsts[r])}, v{V_KL}, {srd('ws')}, s{S_T4} offen sc1", ('p', r))
    SUM = T + 4
    SUM = V_SEL
    g.e(f"s_mov_b32 s{S_T0}, 0x3f80")
    g.e(f"s_mov_b32 s{S_T1}, 0x3f800000")
    for i in range(8): g.e(f"v_mov_b32 v{SUM+i}, 0")
    for r in range(16):
        g.wait_vm(('p', r))
        for j in range(4):
            g.e(f"v_dot2_f32_bf16 v{SUM+2*j}, v{dsts[r]+j}, s{S_T0}, v{SUM+2*j}")
            g.e(f"v_dot2_f32_bf16 v{SUM+2*j+1}, v{dsts[r]+j}, s{S_T1}, v{SUM+2*j+1}")
    for j in range(4): g.e(f"v_cvt_pk_bf16_f32 v{T+j}, v{SUM+2*j}, v{SUM+2*j+1}")
    SCR = 9 * SLOT
    g.e(f"v_lshlrev_b32 v{T+4}, 4, v{V_LANE}")
    g.e(f"v_add_u32 v{T+4}, {SCR}, v{T+4}")
    g.e(f"v_add_u32 v{T+5}, s{S_WLDS}, v{T+4}")
    g.e(f"ds_write_b128 v{T+5}, {V(T)}")
    g.e("s_waitcnt lgkmcnt(0)")
    g.e("s_barrier")
    for u in range(4): g.e(f"ds_read_b128 {V(FR+4*u)}, v{T+4} offset:{u*1024}")
    g.e("s_waitcnt lgkmcnt(0)")
    g.stamp("kvsum")
    TT = [ACC0, FR + 16]
    for hs in range(2):
        g.e(mfma(TT[hs], V(FR + 8 * hs), V(PHQ + 8 * hs), True))
        g.e(mfma(TT[hs], V(FR + 8 * hs + 4), V(PHQ + 8 * hs + 4), False))
    g.e(f"s_mov_b32 s{S_T0}, 0x358637bd")
    g.e(f"v_add_f32 v{T}, s{S_T0}, v{TT[0]+8}")
    g.e(f"v_add_f32 v{T+1}, s{S_T0}, v{TT[1]}")
    g.e(f"v_rcp_f32 v{T}, v{T}")
    g.e(f"v_rcp_f32 v{T+1}, v{T+1}")
    for i in range(8):
        g.e(f"v_mul_f32 v{TT[0]+i}, v{TT[0]+i}, v{T}")
        g.e(f"v_mul_f32 v{TT[0]+8+i}, v{TT[1]+8+i}, v{T+1}")
    pack_store_tile(g, TT[0], X, V_X, 'ws', S_OW, 0, sc1=True, tag='ost')
    g.wait_vm('ost')
    publish(g, V_NON, T, S_FOW)
    g.stamp("pubO")
    g.e("s_barrier")
    for kb in range(4, 8):
        wo_read(kb, (2 * kb - 8 + 2) % 8)
    g.e("s_waitcnt lgkmcnt(0)")
    g.e("s_barrier")
    g.stamp("wo1")
    poll(g, V_FL, T, V_NON, S_FOR, "o")
    g.stamp("pollO")
    for c in range(8):
        g.e(f"s_add_u32 s{S_T4}, s{S_OR}, {c*128}")
        dma(g, V_OD, 'ws', S_T4, c * 4096, ('o', c), sc1=True)
    for c in range(8):
        g.wait_vm(('o', c))
        g.e("s_barrier")
        st = FR + 16 * (c & 1)
        for kk in range(4): g.e(f"ds_read_b128 {V(st + 4*kk)}, v{V_RA+kk} offset:{c*4096}")
        for kk in range(4):
            g.e(f"s_waitcnt lgkmcnt({3-kk})")
            g.e(mfma(ACC0, A(16 * c + 4 * kk), V(st + 4 * kk), c == 0 and kk == 0))
    pack_store_tile(g, ACC0, X, V_ST, 'out', S_OUT, 0)
    g.stamp("done")
    g.stamp_flush("A")

def srd_setup(g, names):
    g.e("s_waitcnt lgkmcnt(0)")
    for n in names:
        i = KARG.index(n)
        b = SRD[n]
        g.e(f"s_mov_b32 s{b}, s{S_KARG+2*i}")
        g.e(f"s_mov_b32 s{b+1}, s{S_KARG+2*i+1}")
        g.e(f"s_mov_b32 s{b+2}, {SIZES[n]}")
        g.e(f"s_mov_b32 s{b+3}, 0x00020000")

def role_B(g):
    g.role = "B"; g.stampnames = []; g.nstamp = 1
    RING = 9
    V_XB, V_H, V_GB, V_C = 2, 4, 6, 8
    V_A1, V_A0 = 10, 18
    V_B0 = 26
    V_GS, V_NON, V_FL, V_YS = 27, 28, 29, 30
    V_W32 = 32
    V_TW = 31
    T = 48
    ACCA, ACCB = 64, 80
    FR = 96
    S_SP, S_EB, S_XR, S_HR, S_GW, S_FW, S_FR_, S_GR, S_YO, S_S2 = range(S_R, S_R + 10)
    g.e(f"s_sub_u32 s{S_T5}, s2, 256")
    g.e(f"s_and_b32 s{S_T0}, s{S_T5}, 7")
    g.e(f"s_lshr_b32 s{S_T1}, s{S_T5}, 3")
    g.e(f"s_lshr_b32 s{S_T2}, s{S_T0}, 1")
    g.e(f"s_lshl_b32 s{S_T2}, s{S_T2}, 3")
    g.e(f"s_lshr_b32 s{S_T3}, s{S_T1}, 2")
    g.e(f"s_add_u32 s{S_SP}, s{S_T2}, s{S_T3}")
    g.e(f"s_and_b32 s{S_T2}, s{S_T0}, 1")
    g.e(f"s_lshl_b32 s{S_T2}, s{S_T2}, 2")
    g.e(f"s_and_b32 s{S_T3}, s{S_T1}, 3")
    g.e(f"s_add_u32 s{S_EB}, s{S_T2}, s{S_T3}")
    g.e(f"s_lshl_b32 s{S_XR}, s{S_SP}, 11")
    g.e(f"s_lshl_b32 s{S_HR}, s{S_EB}, 16")
    g.e(f"s_lshl_b32 s{S_S2}, s{S_SP}, 1")
    g.e(f"s_add_u32 s{S_S2}, s{S_S2}, s{S_SEL1}")
    g.e(f"s_lshl_b32 s{S_T2}, s{S_T1}, 3")
    g.e(f"s_add_u32 s{S_T2}, s{S_T2}, s{S_T0}")
    g.e(f"s_lshl_b32 s{S_GR}, s{S_T2}, 14")
    g.e(f"s_add_u32 s{S_GR}, s{S_GR}, {WS_G}")
    g.e(f"s_lshl_b32 s{S_FR_}, s{S_T0}, 7")
    g.e(f"s_add_u32 s{S_FR_}, s{S_FR_}, {WS_FB}")
    g.e(f"s_lshl_b32 s{S_T2}, s{S_SEL1}, 10")
    g.e(f"s_add_u32 s{S_T2}, s{S_T2}, s{S_T1}")
    g.e(f"s_lshl_b32 s{S_YO}, s{S_T2}, 11")
    g.e(f"s_lshl_b32 s{S_T2}, s{S_T0}, 7")
    g.e(f"s_add_u32 s{S_YO}, s{S_YO}, s{S_T2}")
    g.e(f"s_lshl_b32 s{S_T2}, s{S_SEL0}, 6")
    g.e(f"s_add_u32 s{S_YO}, s{S_YO}, s{S_T2}")
    g.e(f"s_add_u32 s{S_YO}, s{S_YO}, 1024")
    g.e(f"s_lshl_b32 s{S_GW}, s{S_EB}, 14")
    g.e(f"s_lshl_b32 s{S_T2}, s{S_S2}, 7")
    g.e(f"s_add_u32 s{S_GW}, s{S_GW}, s{S_T2}")
    g.e(f"s_lshl_b32 s{S_T2}, s{S_SEL0}, 6")
    g.e(f"s_add_u32 s{S_GW}, s{S_GW}, s{S_T2}")
    g.e(f"s_add_u32 s{S_GW}, s{S_GW}, {WS_G}")
    g.e(f"s_lshl_b32 s{S_FW}, s{S_EB}, 7")
    g.e(f"s_lshl_b32 s{S_T2}, s{S_SP}, 2")
    g.e(f"s_add_u32 s{S_FW}, s{S_FW}, s{S_T2}")
    g.e(f"s_add_u32 s{S_FW}, s{S_FW}, {WS_FB}")
    lane_consts_common(g, T)
    g.e(f"v_lshl_add_u32 v{V_XB}, v{T}, 16, v{T+3}")
    g.e(f"v_add_u32 v{V_XB+1}, 1024, v{V_XB}")
    g.e(f"v_lshl_add_u32 v{V_H}, v{T}, 10, v{T+3}")
    g.e(f"v_add_u32 v{V_H+1}, {32*1024}, v{V_H}")
    g.e(f"v_lshlrev_b32 v{T+4}, 4, v{T+2}")
    g.e(f"v_lshl_add_u32 v{V_GB}, v{T}, 7, v{T+4}")
    g.e(f"v_add_u32 v{V_GB+1}, {32*128}, v{V_GB}")
    g.e(f"v_lshl_add_u32 v{V_C}, v{T}, 17, v{T+3}")
    g.e(f"v_add_u32 v{V_C+1}, {32*131072}, v{V_C}")
    srd_setup(g, ['xB', 'Cr', 'Ci', 'Hr', 'Hi', 'out', 'dbg', 'ws'])
    S_ROTB = 98
    if 'norot' in OPT: g.e(f"s_mov_b32 s{S_ROTB}, 0")
    else: g.e(f"s_add_u32 s{S_ROTB}, s{S_SP}, s{S_EB}")
    seq = []
    for t in range(8):
        seq += [(V_XB, 'xB', S_XR, t * 128, ('x', t)), (V_H, 'Hr', S_HR, t * 128, ('hr', t)), (V_H, 'Hi', S_HR, t * 128, ('hi', t))]
    g.e(f"s_mov_b32 s{S_T5}, 0")
    seq += [(V_C, 'Cr', S_T5, 0, ('c', 0)), (V_C, 'Ci', S_T5, 0, ('c', 1))]
    ptr = [0]
    def issue_upto(lim):
        while ptr[0] < min(lim, len(seq)):
            vo, sn, sb, imm, tag = seq[ptr[0]]
            if tag[0] == 'c': dma_chunk(g, vo, sn, sb, imm, (ptr[0] % RING) * SLOT, tag)
            else: dma_chunk_rot(g, vo, sn, sb, S_ROTB, tag[1], 7, 128, 0, (ptr[0] % RING) * SLOT, tag)
            ptr[0] += 1
    DEPTH0 = optv('bdepth', 9)
    BD = optv('bd', 9)
    issue_upto(DEPTH0)
    if 'nopf' not in OPT:
        PF = 126
        g.e(f"v_lshrrev_b32 v{T}, 4, v{V_LANE}")
        g.e(f"s_and_b32 s{S_T0}, s{S_EB}, 3")
        g.e(f"s_lshl_b32 s{S_T0}, s{S_T0}, 2")
        g.e(f"s_add_u32 s{S_T0}, s{S_T0}, s{S_W}")
        g.e(f"s_lshl_b32 s{S_T0}, s{S_T0}, 2")
        g.e(f"v_add_u32 v{T}, s{S_T0}, v{T}")
        g.e(f"v_and_b32 v{T+1}, 31, v{T}")
        g.e(f"v_lshlrev_b32 v{T+1}, 16, v{T+1}")
        g.e(f"v_lshrrev_b32 v{T}, 5, v{T}")
        g.e(f"v_lshl_add_u32 v{T+1}, v{T}, 10, v{T+1}")
        g.e(f"v_and_b32 v{T}, 15, v{V_LANE}")
        g.e(f"v_lshl_add_u32 v{T+1}, v{T}, 6, v{T+1}")
        g.vmem(f"buffer_load_dword v{PF}, v{T+1}, {srd('xB')}, s{S_XR} offen", 'pf')
        g.e(f"v_bfe_u32 v{T+1}, v{V_LANE}, 4, 1")
        g.e(f"v_lshlrev_b32 v{T+1}, 10, v{T+1}")
        g.e(f"v_lshl_add_u32 v{T+1}, v{T}, 6, v{T+1}")
        g.e(f"s_and_b32 s{S_T0}, s{S_SP}, 7")
        g.e(f"s_lshl_b32 s{S_T0}, s{S_T0}, 2")
        g.e(f"s_add_u32 s{S_T0}, s{S_T0}, s{S_W}")
        g.e(f"s_lshl_b32 s{S_T0}, s{S_T0}, 11")
        g.e(f"s_add_u32 s{S_T0}, s{S_T0}, s{S_HR}")
        g.vmem(f"buffer_load_dword v{PF}, v{T+1}, {srd('Hr')}, s{S_T0} offen", 'pf')
        g.vmem(f"buffer_load_dword v{PF}, v{T+1}, {srd('Hi')}, s{S_T0} offen", 'pf')
    g.stamp("issued")
    rdA_base(g, T, T + 1)
    g.e(f"s_lshl_b32 s{S_T2}, s{S_SEL1}, 12")
    g.e(f"s_lshl_b32 s{S_T3}, s{S_SEL0}, 12")
    for kk in range(4):
        g.e(f"v_xor_b32 v{T+1}, {kk*32}, v{T}")
        g.e(f"v_add_u32 v{V_A1+kk}, s{S_T2}, v{T+1}")
        g.e(f"v_add_u32 v{V_A1+4+kk}, 0x10000, v{V_A1+kk}")
        g.e(f"v_add_u32 v{V_A0+kk}, s{S_T3}, v{T+1}")
        g.e(f"v_add_u32 v{V_A0+4+kk}, 0x10000, v{V_A0+kk}")
    rdB_base(g, V_B0, T)
    g.e(f"s_lshl_b32 s{S_T2}, s{S_SEL0}, 6")
    g.e(f"v_xor_b32 v{V_B0}, s{S_T2}, v{V_B0}")
    g.e(f"v_and_b32 v{T}, 31, v{V_LANE}")
    g.e(f"v_lshrrev_b32 v{T+1}, 5, v{V_LANE}")
    g.e(f"v_lshlrev_b32 v{T+2}, 18, v{T}")
    g.e(f"v_lshl_add_u32 v{T+2}, v{T+1}, 3, v{T+2}")
    for mi, mn in enumerate(('Cr', 'Ci')):
        for ks in range(2):
            for q in range(2):
                d = V_W32 + 8 * mi + 4 * ks + 2 * q
                g.vmem(f"buffer_load_dwordx2 {V(d,2)}, v{T+2}, {srd(mn)}, 0 offen offset:{32*ks+16*q}", 'w32')
    g.e(f"v_lshlrev_b32 v{T+3}, 12, v{T}")
    g.e(f"s_lshl_b32 s{S_T2}, s{S_S2}, 1")
    g.vmem(f"buffer_load_ushort v{V_TW}, v{T+3}, {srd('Cr')}, s{S_T2} offen", 'w32')
    g.vmem(f"buffer_load_ushort v{V_FL}, v{T+3}, {srd('Ci')}, s{S_T2} offen", 'w32')
    g.e(f"v_lshlrev_b32 v{V_GS}, 17, v{T}")
    g.e(f"v_lshl_add_u32 v{V_GS}, v{T+1}, 4, v{V_GS}")
    g.e(f"v_lshlrev_b32 v{V_YS}, 16, v{T}")
    g.e(f"v_lshl_add_u32 v{V_YS}, v{T+1}, 4, v{V_YS}")
    def rA(dst, which, ci, kk):
        off = (ci % RING) * SLOT
        base = V_A1 if which else V_A0
        if off >= 65536: return f"ds_read_b128 {dst}, v{base+4+kk} offset:{off-65536}"
        return f"ds_read_b128 {dst}, v{base+kk} offset:{off}"
    for t in range(8):
        g.wait_vm([('x', t), ('hr', t), ('hi', t)])
        g.e("s_barrier")
        for kk in range(4):
            g.e(rA(A(12 * kk), 1, 3 * t, kk))
            g.e(rA(A(12 * kk + 4), 0, 3 * t + 1, kk))
            g.e(rA(A(12 * kk + 8), 0, 3 * t + 2, kk))
        for kk in range(4):
            g.e(f"s_waitcnt lgkmcnt({9 - 3*kk})")
            first = (t == 0 and kk == 0)
            if kk == 3:
                g.e("s_barrier")
                issue_upto(3 * t + 3 + BD)
                if t == 3: nonce_issue(g, V_NON)
            g.e(mfma(ACCA, A(12 * kk), A(12 * kk + 4), first))
            g.e(mfma(ACCB, A(12 * kk), A(12 * kk + 8), first))
        g.stamp(f"g{t}")
    g.wait_vm('w32')
    V_TI = T + 15
    g.e(f"v_lshlrev_b32 v{V_TW}, 16, v{V_TW}")
    g.e(f"v_lshlrev_b32 v{V_TI}, 16, v{V_FL}")
    AB, BB, NB = 96, 104, 112
    for j in range(8):
        g.e(f"v_cvt_pk_bf16_f32 v{AB+j}, v{ACCA+2*j}, v{ACCA+2*j+1}")
        g.e(f"v_cvt_pk_bf16_f32 v{BB+j}, v{ACCB+2*j}, v{ACCB+2*j+1}")
        g.e(f"v_cvt_pk_bf16_f32 v{NB+j}, -v{ACCB+2*j}, -v{ACCB+2*j+1}")
    GR, GI = ACCA, ACCB
    CR, CI = V_W32, V_W32 + 8
    for ks in range(2):
        g.e(mfma(GR, V(AB + 4 * ks), V(CR + 4 * ks), ks == 0))
        g.e(mfma(GI, V(AB + 4 * ks), V(CI + 4 * ks), ks == 0))
    for ks in range(2):
        g.e(mfma(GR, V(NB + 4 * ks), V(CI + 4 * ks), False))
        g.e(mfma(GI, V(BB + 4 * ks), V(CR + 4 * ks), False))
    R2 = 96
    for i in range(16):
        g.e(f"v_mul_f32 v{R2+i}, v{GI+i}, v{V_TI}")
        g.e(f"v_mul_f32 v{GI+i}, v{GI+i}, v{V_TW}")
        g.e(f"v_fma_f32 v{R2+i}, v{GR+i}, v{V_TW}, -v{R2+i}")
        g.e(f"v_fma_f32 v{GI+i}, v{GR+i}, v{V_TI}, v{GI+i}")
    pack_store_tile(g, R2, T, V_GS, 'ws', S_GW, 0, sc1=True, tag='gst')
    g.e(f"s_add_u32 s{S_T4}, s{S_GW}, 8192")
    pack_store_tile(g, GI, 112, V_GS, 'ws', S_T4, 0, neg=True, sc1=True, tag='gst')
    g.stamp("gst")
    nonce_check(g, V_NON, T)
    g.wait_vm('gst')
    g.e("s_barrier")
    g.e(f"s_cmp_lg_u32 s{S_W}, 0")
    g.e("s_cbranch_scc1 L_B_nopub")
    publish(g, V_NON, T, S_FW)
    g.label("L_B_nopub")
    g.stamp("pubG")
    g.e(f"v_and_b32 v{V_FL}, 31, v{V_LANE}")
    g.e(f"v_lshlrev_b32 v{V_FL}, 2, v{V_FL}")
    poll(g, V_FL, T, V_NON, S_FR_, "b")
    g.stamp("pollG")
    dma_chunk(g, V_GB, 'ws', S_GR, 0, 0 * SLOT, ('g', 0), sc1=True)
    dma_chunk(g, V_GB, 'ws', S_GR, 8192, 1 * SLOT, ('g', 1), sc1=True)
    for ri in range(2):
        g.wait_vm(('g', ri))
        g.e("s_barrier")
        for kk in range(4):
            for s in rB('a', 8 * kk, V_B0, ri * SLOT + kk * 2048): g.e(s)
            g.e(rA(A(8 * kk + 4), 1, 24 + ri, kk))
        for kk in range(4):
            g.e(f"s_waitcnt lgkmcnt({9 - 3*kk})")
            g.e(mfma(ACCA, A(8 * kk), A(8 * kk + 4), ri == 0 and kk == 0))
    pack_store_tile(g, ACCA, T, V_YS, 'out', S_YO, 0)
    g.stamp("done")
    g.stamp_flush("B")

def build(path):
    g = K()
    g.stampnames = []
    g.e("s_cmp_ge_u32 s2, 512")
    g.e("s_cbranch_scc1 L_end")
    g.e(f"s_load_dwordx16 s[{S_KARG}:{S_KARG+15}], s[0:1], 0")
    g.e(f"s_load_dwordx8 s[{S_KARG+16}:{S_KARG+23}], s[0:1], 64")
    if 'stamp' in OPT: g.e(f"v_mov_b32 v{V_STAMP}, 0")
    g.e(f"v_and_b32 v{V_LANE}, 63, v0")
    g.e(f"v_lshrrev_b32 v2, 6, v0")
    g.e(f"v_readfirstlane_b32 s{S_W}, v2")
    g.e(f"s_lshl_b32 s{S_WLDS}, s{S_W}, 10")
    g.e(f"s_and_b32 s{S_SEL0}, s{S_W}, 1")
    g.e(f"s_lshr_b32 s{S_SEL1}, s{S_W}, 1")
    g.stamp("start")
    g.e("s_cmp_ge_u32 s2, 256")
    g.e("s_cbranch_scc1 L_roleB")
    if 'noA' in OPT: g.e("s_branch L_end")
    role_A(g)
    namesA = g.stampnames
    g.e("s_endpgm")
    g.label("L_roleB")
    g.vm = []
    if 'noB' in OPT: g.e("s_branch L_end")
    role_B(g)
    namesB = ['start'] + g.stampnames
    g.label("L_end")
    g.e("s_endpgm")
    body = "\n".join(fix(g.lines)) + "\n"
    ref = open('concat_heads__linear_kernel_hedgehog__spectral_fnet__prompt.s.ref').read().split("\n")
    hdr = [l for l in ref if l.startswith(";") and "@launch" not in l and "Override launch" not in l and "grid=ceil" not in l][:13]
    out = "\n".join(l for l in hdr if l.startswith("; ")) + "\n"
    out += f"; @launch grid=(512,1,1) block=(256,1,1) lds={LDS_TOTAL}\n"
    if 'stamp' in OPT:
        out += f"; stampsA {' '.join(namesA)}\n; stampsB {' '.join(namesB)}\n"
    out += '.amdgcn_target "amdgcn-amd-amdhsa--gfx950"\n.text\n'
    out += f".globl {KNAME}\n.p2align 8\n.type {KNAME},@function\n{KNAME}:\n" + body
    out += f'''.section .rodata,"a"
.p2align 6
.amdhsa_kernel {KNAME}
  .amdhsa_next_free_vgpr 256
  .amdhsa_next_free_sgpr 102
  .amdhsa_accum_offset 128
  .amdhsa_group_segment_fixed_size 0
  .amdhsa_kernarg_size 96
  .amdhsa_user_sgpr_count 2
  .amdhsa_user_sgpr_kernarg_segment_ptr 1
  .amdhsa_system_sgpr_workgroup_id_x 1
.end_amdhsa_kernel
'''
    open(path, "w").write(out)

if __name__ == "__main__":
    build(sys.argv[1] if len(sys.argv) > 1 else "k2.s")
```
